```python
import torch

def _softmax(x, axis=-1):
    return torch.softmax(x, dim=axis)
def _gelu(x):
    return torch.nn.functional.gelu(x, approximate="tanh")
def _silu(x):
    return torch.nn.functional.silu(x)
def _sigmoid(x):
    return torch.sigmoid(x)
def _layernorm(x, axis=-1, eps=1e-5):
    m = x.mean(dim=axis, keepdim=True)
    v = x.var(dim=axis, keepdim=True, unbiased=False)
    return (x - m) / torch.sqrt(v + eps)
def _scatter_add(tgt, idx, src, axis=0):
    return tgt.clone().index_add_(axis, idx, src)
def _segment_sum(src, seg, n):
    out = torch.zeros((n,) + src.shape[1:], dtype=src.dtype)
    return out.index_add_(0, seg, src)
def _pad(x, pw):
    flat = tuple(v for pair in reversed(pw) for v in pair)
    return torch.nn.functional.pad(x, flat)

kernel_name = 'standalone__weight_only_int_omniquant__prompt'

def setup_inputs():

    _w = (lambda a: (lambda t: t.to(torch.bfloat16) if t.is_floating_point() else t)(torch.as_tensor(a)))
    B, S, D, F = 1, 2048, 1024, 3584
    bits = 3
    G = 128 if 128 > 0 else D
    D = (D // G) * G
    ng = D // G
    qmax = (1 << bits) - 1
    qw = torch.randint(0, qmax + 1, (D, F)).to(torch.int32)
    scales = (torch.abs((lambda *s: torch.randn(*s, dtype=torch.bfloat16) * 0.05)(ng, F)) * 0.05 + 0.01).to(float)
    zeros = torch.randint(0, qmax + 1, (ng, F)).to(float)
    act_scale = (torch.abs((lambda *s: torch.randn(*s, dtype=torch.bfloat16) * 0.05)(D)) * 0.5 + 0.5).to(float)
    return {
        "x": _w((lambda *s: torch.randn(*s, dtype=torch.bfloat16) * 0.05)(B, S, D)),
        "qw": _w(qw),
        "scales": _w(scales),
        "zeros": _w(zeros),
        "act_scale": _w(act_scale),
    }

def reference(x, qw, scales, zeros, act_scale):
    B, S, D = x.shape
    ng, F = scales.shape
    G = D // ng
    s = (lambda x, n, axis: torch.repeat_interleave(x, n, dim=axis))(scales, G, axis=0)
    z = (lambda x, n, axis: torch.repeat_interleave(x, n, dim=axis))(zeros, G, axis=0)
    w = ((lambda x, dt: x.to(dt))(qw, x.dtype) - z) * s
    xs = x * (lambda x, dt: x.to(dt))(act_scale, x.dtype)
    return torch.einsum("bsd,df->bsf", xs, w)
```

```python
HEADER = """; Kernarg layout for this problem (64 bytes, ptrs only, base s[0:1]):
"""
MAIN = "standalone__weight_only_int_omniquant__prompt_kernel"

class Asm:
    def __init__(self):
        self.lines = []
        self.uid = 0
    def __call__(self, s=""):
        for l in s.split("\n"):
            self.lines.append(l)
    def i(self, s):
        self.lines.append("    " + s)
    def label(self, name):
        self.lines.append(name + ":")
    def newlabel(self, p="L"):
        self.uid += 1
        return f"{p}_{self.uid}"
    def text(self):
        return "\n".join(self.lines) + "\n"

def kernel_begin(a, name):
    a(".p2align 8")
    a(f".globl {name}")
    a(f".type {name},@function")
    a.label(name)

def descriptor(a, name, vgpr, sgpr, accum=None, wg_y=False, denorm32=None):
    if accum is None:
        accum = (vgpr + 3) // 4 * 4
    a('.section .rodata,"a"')
    a(".p2align 6")
    a(f".amdhsa_kernel {name}")
    a(f"  .amdhsa_next_free_vgpr {vgpr}")
    a(f"  .amdhsa_next_free_sgpr {sgpr}")
    a(f"  .amdhsa_accum_offset {accum}")
    a("  .amdhsa_group_segment_fixed_size 0")
    a("  .amdhsa_kernarg_size 64")
    a("  .amdhsa_user_sgpr_count 2")
    a("  .amdhsa_user_sgpr_kernarg_segment_ptr 1")
    a("  .amdhsa_system_sgpr_workgroup_id_x 1")
    if wg_y:
        a("  .amdhsa_system_sgpr_workgroup_id_y 1")
    if denorm32 is not None:
        a(f"  .amdhsa_float_denorm_mode_32 {denorm32}")
    a(".end_amdhsa_kernel")
    a(".text")

def srd(a, d, base, nbytes):
    a.i(f"s_mov_b32 s{d}, s{base}")
    a.i(f"s_and_b32 s{d+1}, s{base+1}, 0xffff")
    a.i(f"s_mov_b32 s{d+2}, {nbytes}")
    a.i(f"s_mov_b32 s{d+3}, 0x00020000")
```

```python
import sys
from asmlib import *

M, K, N = 2048, 1024, 3584
MT, NT, KS = 128, 224, 64
BLK = 8 * NT * 16
WS_W = 0
WS_XS = 8 << 20
STAGE = 16384 + BLK
NSLOT = 3

def gen_prep(a, name, fold):
    kernel_begin(a, name)
    a.i("s_cmp_ge_u32 s2, 256")
    a.i("s_cbranch_scc1 L_prep_end")
    a.i("s_load_dwordx8 s[4:11], s[0:1], 0")
    a.i("s_load_dwordx2 s[12:13], s[0:1], 32")
    a.i("s_load_dwordx2 s[14:15], s[0:1], 56")
    a.i("s_and_b32 s16, s2, 15")
    a.i("s_lshr_b32 s17, s2, 4")
    a.i("v_lshrrev_b32 v1, 8, v0")
    a.i("v_and_b32 v2, 0xff, v0")
    a.i("v_readfirstlane_b32 s18, v1")
    a.i("v_cmp_gt_u32 vcc, 96, v2")
    a.i("v_subrev_u32 v3, 96, v2")
    a.i("s_nop 0")
    a.i("v_cndmask_b32 v3, v3, v2, vcc")
    a.i("v_cndmask_b32 v4, 1, 0, vcc")
    a.i("v_lshrrev_b32 v5, 5, v3")
    a.i("v_lshlrev_b32 v5, 1, v5")
    a.i("v_bfe_u32 v6, v3, 2, 1")
    a.i("v_add_u32 v5, v5, v6")
    a.i("v_bfe_u32 v6, v3, 3, 2")
    a.i("v_subrev_u32 v7, 192, v2")
    a.i("v_lshrrev_b32 v8, 4, v7")
    a.i("v_bfe_u32 v9, v7, 2, 2")
    a.i("v_cmp_le_u32 vcc, 192, v2")
    a.i("s_nop 1")
    a.i("v_cndmask_b32 v4, v4, v8, vcc")
    a.i("v_cndmask_b32 v6, v6, v9, vcc")
    a.i("v_mov_b32 v10, 6")
    a.i("v_cndmask_b32 v5, v5, v10, vcc")
    a.i("v_mul_u32_u24 v4, 112, v4")
    a.i("v_lshlrev_b32 v5, 4, v5")
    a.i("v_lshlrev_b32 v6, 2, v6")
    a.i("v_and_b32 v7, 3, v2")
    a.i("v_add3_u32 v4, v4, v5, v6")
    a.i("v_add_u32 v4, v4, v7")
    a.i("v_lshlrev_b32 v4, 4, v4")
    a.i("s_waitcnt lgkmcnt(0)")
    srd(a, 20, 6, K * N * 4)
    srd(a, 24, 8, 8 * N * 2)
    srd(a, 28, 10, 8 * N * 2)
    srd(a, 32, 14, 16 << 20)
    srd(a, 36, 4, M * K * 2)
    srd(a, 40, 12, K * 2)
    a.i("s_lshl_b32 s19, s17, 6")
    a.i("s_lshl_b32 s44, s18, 3")
    a.i("s_add_u32 s19, s19, s44")
    a.i("s_mul_i32 s45, s19, 14336")
    a.i("s_mul_i32 s46, s16, 896")
    a.i("s_add_u32 s45, s45, s46")
    a.i("v_lshlrev_b32 v11, 2, v2")
    a.i("v_cmp_gt_u32 vcc, 224, v2")
    a.i("s_and_saveexec_b64 s[48:49], vcc")
    a.i("s_cbranch_execz L_prep_x")
    for i in range(4):
        for e in range(8):
            a.i(f"s_add_u32 s47, s45, {(16*i + e) * 14336}")
            a.i(f"buffer_load_dword v{32 + 8*i + e}, v11, s[20:23], s47 offen")
    a.i("s_lshr_b32 s50, s17, 1")
    a.i("s_mul_i32 s50, s50, 7168")
    a.i("s_mul_i32 s51, s16, 448")
    a.i("s_add_u32 s50, s50, s51")
    a.i("v_lshlrev_b32 v12, 1, v2")
    a.i("buffer_load_ushort v13, v12, s[24:27], s50 offen")
    a.i("buffer_load_ushort v14, v12, s[28:31], s50 offen")
    a.i("s_lshl_b32 s52, s19, 1")
    a.i("s_add_u32 s12, s12, s52")
    a.i("s_addc_u32 s13, s13, 0")
    for i in range(4):
        a.i(f"s_load_dwordx4 s[{56+4*i}:{59+4*i}], s[12:13], {32*i}")
    a.i("s_waitcnt vmcnt(0) lgkmcnt(0)")
    a.i("v_lshlrev_b32 v13, 16, v13")
    a.i("v_lshlrev_b32 v14, 16, v14")
    a.i(f"s_mul_i32 s53, s16, {16*BLK}")
    a.i(f"s_mul_i32 s54, s17, {BLK}")
    a.i("s_add_u32 s53, s53, s54")
    a.i("s_mul_i32 s54, s18, 3584")
    a.i("s_add_u32 s53, s53, s54")
    for i in range(4):
        for e in range(8):
            r = 32 + 8*i + e
            a.i(f"v_cvt_f32_i32 v{r}, v{r}")
            a.i(f"v_sub_f32 v{r}, v{r}, v14")
        for e in range(0, 8, 2):
            r = 32 + 8*i + e
            a.i(f"v_cvt_pk_bf16_f32 v16, v{r}, v{r+1}")
            a.i(f"v_lshlrev_b32 v{r}, 16, v16")
            a.i(f"v_and_b32 v{r+1}, 0xffff0000, v16")
        for e in range(8):
            r = 32 + 8*i + e
            a.i(f"v_mul_f32 v{r}, v{r}, v13")
        if fold:
            for e in range(8):
                r = 32 + 8*i + e
                sreg = 56 + 4*i + e // 2
                if e % 2 == 0:
                    a.i(f"s_lshl_b32 s72, s{sreg}, 16")
                else:
                    a.i(f"s_and_b32 s72, s{sreg}, 0xffff0000")
                a.i(f"v_mul_f32 v{r}, s72, v{r}")
        for e in range(0, 8, 2):
            r = 32 + 8*i + e
            a.i(f"v_cvt_pk_bf16_f32 v{16 + e//2}, v{r}, v{r+1}")
        a.i(f"s_add_u32 s55, s53, {2*i*3584}")
        a.i(f"buffer_store_dwordx4 v[16:19], v4, s[32:35], s55 offen")
        a.i("s_nop 1")
    a.label("L_prep_x")
    a.i("s_mov_b64 exec, s[48:49]")
    if not fold:
        for t in range(2):
            a.i(f"v_add_u32 v20, {512*t}, v0")
            a.i("v_and_b32 v21, 127, v20")
            a.i("v_lshlrev_b32 v21, 4, v21")
            a.i("v_lshrrev_b32 v22, 7, v20")
            a.i("s_lshl_b32 s56, s2, 3")
            a.i("v_add_u32 v22, s56, v22")
            a.i("v_lshlrev_b32 v22, 11, v22")
            a.i("v_add_u32 v22, v22, v21")
            a.i("buffer_load_dwordx4 v[24:27], v22, s[36:39], 0 offen")
            a.i("buffer_load_dwordx4 v[28:31], v21, s[40:43], 0 offen")
            a.i("s_waitcnt vmcnt(0)")
            for d in range(4):
                a.i(f"v_lshlrev_b32 v32, 16, v{24+d}")
                a.i(f"v_and_b32 v33, 0xffff0000, v{24+d}")
                a.i(f"v_lshlrev_b32 v34, 16, v{28+d}")
                a.i(f"v_and_b32 v35, 0xffff0000, v{28+d}")
                a.i("v_mul_f32 v32, v32, v34")
                a.i("v_mul_f32 v33, v33, v35")
                a.i(f"v_cvt_pk_bf16_f32 v{36+d}, v32, v33")
            a.i(f"s_mov_b32 s57, {WS_XS}")
            a.i("buffer_store_dwordx4 v[36:39], v22, s[32:35], s57 offen")
            a.i("s_nop 1")
    a.label("L_prep_end")
    a.i("s_endpgm")

def gen_gemm(a, name, fold, stamps=False):
    ACC = 0
    XF = [112, 156]
    WF = [128, 172]
    VA = 200
    VB = 204
    VX0, VX1, VW = 206, 207, 208
    BX0, BX1, BW = 209, 210, 211
    VT = 212
    kernel_begin(a, name)
    a.i("s_cmp_ge_u32 s2, 256")
    a.i("s_cbranch_scc1 L_gemm_end")
    a.i("s_load_dwordx2 s[4:5], s[0:1], 0")
    a.i("s_load_dwordx2 s[6:7], s[0:1], 40")
    a.i("s_load_dwordx2 s[8:9], s[0:1], 56")
    if stamps:
        a.i("s_memrealtime s[60:61]")
    a.i(f"v_lshrrev_b32 v{VT}, 6, v0")
    a.i(f"v_and_b32 v{VT+1}, 63, v0")
    a.i(f"v_readfirstlane_b32 s16, v{VT}")
    a.i("s_and_b32 s17, s2, 7")
    a.i("s_lshr_b32 s18, s2, 3")
    a.i("s_and_b32 s19, s17, 1")
    a.i("s_lshl_b32 s19, s19, 3")
    a.i("s_lshr_b32 s20, s18, 2")
    a.i("s_add_u32 s19, s19, s20")
    a.i("s_lshr_b32 s20, s17, 1")
    a.i("s_lshl_b32 s20, s20, 2")
    a.i("s_and_b32 s21, s18, 3")
    a.i("s_add_u32 s20, s20, s21")
    L = VT + 1
    a.i(f"v_lshrrev_b32 v{VT+2}, 3, v{L}")
    a.i("s_lshl_b32 s22, s19, 7")
    a.i("s_lshl_b32 s23, s16, 5")
    a.i("s_add_u32 s22, s22, s23")
    a.i(f"v_add_u32 v{VT+2}, s22, v{VT+2}")
    a.i(f"v_lshlrev_b32 v{VT+2}, 11, v{VT+2}")
    a.i(f"v_and_b32 v{VT+3}, 7, v{L}")
    a.i(f"v_lshrrev_b32 v{VT+4}, 4, v{L}")
    a.i(f"v_xor_b32 v{VT+5}, v{VT+3}, v{VT+4}")
    a.i(f"v_xor_b32 v{VT+6}, 4, v{VT+5}")
    a.i(f"v_lshl_add_u32 v{VT+5}, v{VT+5}, 4, v{VT+2}")
    a.i(f"v_lshl_add_u32 v{VT+6}, v{VT+6}, 4, v{VT+2}")
    for j in range(4):
        a.i(f"v_add_u32 v{VA+j}, {j*8*2048 - j*1024}, v{VT+5+(j&1)}")
    a.i("s_mul_i32 s24, s16, 7168")
    a.i(f"v_lshlrev_b32 v{VB}, 4, v{L}")
    a.i(f"v_add_u32 v{VB}, s24, v{VB}")
    a.i(f"v_add_u32 v{VB+1}, 4096, v{VB}")
    a.i("s_lshr_b32 s25, s16, 1")
    a.i("s_and_b32 s26, s16, 1")
    a.i(f"v_and_b32 v{VT+2}, 15, v{L}")
    a.i(f"v_lshrrev_b32 v{VT+3}, 4, v{L}")
    a.i(f"v_lshrrev_b32 v{VT+4}, 1, v{VT+2}")
    a.i(f"v_xor_b32 v{VT+4}, v{VT+4}, v{VT+3}")
    a.i(f"v_lshlrev_b32 v{VT+4}, 4, v{VT+4}")
    a.i(f"v_lshl_add_u32 v{BX0}, v{VT+2}, 7, v{VT+4}")
    a.i("s_lshl_b32 s27, s25, 13")
    a.i(f"v_add_u32 v{BX0}, s27, v{BX0}")
    a.i(f"v_xor_b32 v{BX1}, 64, v{BX0}")
    a.i(f"v_mul_u32_u24 v{BW}, 3584, v{VT+3}")
    a.i(f"v_lshl_add_u32 v{BW}, v{VT+2}, 4, v{BW}")
    a.i("s_mul_i32 s28, s26, 1792")
    a.i("s_add_u32 s28, s28, 16384")
    a.i(f"v_add_u32 v{BW}, s28, v{BW}")
    a.i("s_lshl_b32 s29, s19, 7")
    a.i("s_lshl_b32 s30, s25, 6")
    a.i("s_add_u32 s29, s29, s30")
    a.i(f"v_add_u32 v{VT+7}, s29, v{VT+2}")
    a.i("s_mov_b32 s31, 7168")
    a.i(f"v_mul_lo_u32 v{VT+7}, v{VT+7}, s31")
    a.i("s_mul_i32 s32, s20, 448")
    a.i("s_mul_i32 s33, s26, 192")
    a.i("s_add_u32 s33, s33, s32")
    a.i(f"v_lshl_add_u32 v{VT+8}, v{VT+3}, 4, v{VT+7}")
    a.i(f"v_add_u32 v{VT+8}, s33, v{VT+8}")
    a.i("s_lshl_b32 s33, s26, 5")
    a.i("s_add_u32 s33, s33, s32")
    a.i("s_add_u32 s33, s33, 384")
    a.i(f"v_lshl_add_u32 v{VT+9}, v{VT+3}, 3, v{VT+7}")
    a.i(f"v_add_u32 v{VT+9}, s33, v{VT+9}")
    VO4, VO2 = VT + 8, VT + 9
    a.i("s_waitcnt lgkmcnt(0)")
    if fold:
        srd(a, 36, 4, M * K * 2)
    else:
        a.i(f"s_add_u32 s4, s8, {WS_XS}")
        a.i("s_addc_u32 s5, s9, 0")
        srd(a, 36, 4, M * K * 2)
    srd(a, 40, 8, K * N * 2)
    srd(a, 44, 6, M * N * 2)
    a.i("s_mov_b32 s48, 0")
    a.i(f"s_mul_i32 s49, s20, {16*BLK}")
    a.i("s_lshl_b32 s52, s16, 12")
    a.i("s_add_u32 s53, s24, 16384")
    def dma(slot_sreg, part):
        if part == 0:
            a.i(f"s_add_u32 m0, {slot_sreg}, s52")
            a.i("s_nop 0")
            for j in range(4):
                a.i(f"buffer_load_dwordx4 v{VA+j}, s[36:39], s48 offen offset:{j*1024} lds")
        elif part == 1:
            a.i(f"s_add_u32 m0, {slot_sreg}, s53")
            a.i("s_nop 0")
            for j in range(4):
                a.i(f"buffer_load_dwordx4 v{VB}, s[40:43], s49 offen offset:{j*1024} lds")
        else:
            a.i(f"s_add_u32 s54, {slot_sreg}, s53")
            a.i("s_add_u32 m0, s54, 4096")
            a.i("s_nop 0")
            for j in range(3):
                a.i(f"buffer_load_dwordx4 v{VB+1}, s[40:43], s49 offen offset:{j*1024} lds")
    def adv():
        a.i("s_add_u32 s48, s48, 128")
        a.i(f"s_add_u32 s49, s49, {BLK}")
    for st in range(3):
        a.i(f"s_mov_b32 s50, {st*STAGE}")
        for p in range(3):
            dma("s50", p)
        adv()
    for r in range(112):
        a.i(f"v_mov_b32 v{r}, 0")
    a.i(f"v_mov_b32 v{VX0}, v{BX0}")
    a.i(f"v_mov_b32 v{VX1}, v{BX1}")
    a.i(f"v_mov_b32 v{VW}, v{BW}")
    a.i("s_waitcnt vmcnt(22)")
    a.i("s_barrier")
    def reads(setn, h):
        out = []
        vx = VX1 if h else VX0
        order = [('x', 0), ('w', 0), ('x', 1), ('x', 2), ('x', 3)] + [('w', j) for j in range(1, 7)]
        for kind, idx in order:
            if kind == 'x':
                r = XF[setn] + 4*idx
                out.append(f"ds_read_b128 v[{r}:{r+3}], v{vx} offset:{idx*2048}")
            else:
                r = WF[setn] + 4*idx
                out.append(f"ds_read_b128 v[{r}:{r+3}], v{VW} offset:{h*14336 + idx*256}")
        return out
    def mfmas(setn):
        out = []
        for j in range(7):
            for i in range(4):
                c = ACC + (j*4 + i) * 4
                w = WF[setn] + 4*j
                x = XF[setn] + 4*i
                out.append(f"v_mfma_f32_16x16x32_bf16 v[{c}:{c+3}], v[{w}:{w+3}], v[{x}:{x+3}], v[{c}:{c+3}]")
        return out
    for r in reads(0, 0):
        a.i(r)
    a.i("s_mov_b32 s51, 0")
    a.i("s_mov_b32 s50, 0")
    a.i("s_waitcnt lgkmcnt(0)")
    a.label("L_loop")
    mm = mfmas(0); rr = reads(1, 1)
    for k, m_ in enumerate(mm):
        a.i(m_)
        if k % 2 == 0 and k // 2 < len(rr):
            a.i(rr[k // 2])
    a.i(f"s_add_u32 s55, s50, {STAGE}")
    a.i(f"s_cmp_eq_u32 s55, {NSLOT*STAGE}")
    a.i("s_cselect_b32 s55, 0, s55")
    a.i(f"v_add_u32 v{VX0}, s55, v{BX0}")
    a.i(f"v_add_u32 v{VX1}, s55, v{BX1}")
    a.i(f"v_add_u32 v{VW}, s55, v{BW}")
    a.i("s_cmp_lt_u32 s51, 13")
    a.i("s_cbranch_scc1 L_w1")
    a.i("s_waitcnt vmcnt(0)")
    a.label("L_w1")
    a.i("s_waitcnt vmcnt(11) lgkmcnt(0)")
    a.i("s_barrier")
    mm = mfmas(1); rr = reads(0, 0)
    for k, m_ in enumerate(mm):
        a.i(m_)
        if k % 2 == 0 and k // 2 < len(rr):
            a.i(rr[k // 2])
        if k in (3, 11, 19):
            lab = a.newlabel("L_nodma")
            a.i("s_cmp_lt_u32 s51, 13")
            a.i(f"s_cbranch_scc0 {lab}")
            dma("s50", {3: 0, 11: 1, 19: 2}[k])
            a.label(lab)
    adv()
    a.i("s_mov_b32 s50, s55")
    a.i("s_add_u32 s51, s51, 1")
    a.i("s_cmp_lt_u32 s51, 16")
    a.i("s_waitcnt lgkmcnt(0)")
    a.i("s_cbranch_scc1 L_loop")
    a.i("s_nop 7")
    a.i("s_nop 1")
    T0 = 112
    for i in range(4):
        a.i(f"s_mov_b32 s56, {i*16*7168}")
        for p in range(3):
            t = T0 + (i*3 + p) * 4
            c0 = ACC + ((2*p)*4 + i) * 4
            c1 = ACC + ((2*p+1)*4 + i) * 4
            a.i(f"v_cvt_pk_bf16_f32 v{t}, v{c0}, v{c0+1}")
            a.i(f"v_cvt_pk_bf16_f32 v{t+1}, v{c0+2}, v{c0+3}")
            a.i(f"v_cvt_pk_bf16_f32 v{t+2}, v{c1}, v{c1+1}")
            a.i(f"v_cvt_pk_bf16_f32 v{t+3}, v{c1+2}, v{c1+3}")
            a.i(f"buffer_store_dwordx4 v[{t}:{t+3}], v{VO4}, s[44:47], s56 offen offset:{64*p}")
        t = T0 + 48 + i*2
        c0 = ACC + (6*4 + i) * 4
        a.i(f"v_cvt_pk_bf16_f32 v{t}, v{c0}, v{c0+1}")
        a.i(f"v_cvt_pk_bf16_f32 v{t+1}, v{c0+2}, v{c0+3}")
        a.i(f"buffer_store_dwordx2 v[{t}:{t+1}], v{VO2}, s[44:47], s56 offen")
    a.label("L_gemm_end")
    a.i("s_endpgm")

def gen(path, fold=1, extra_pre=(), extra_post=()):
    a = Asm()
    hdr = HEADER
    for k in extra_pre:
        hdr += k + "\n"
    hdr += "; @launch kernel=prep_kernel grid=(256,1,1) block=(512,1,1) lds=0\n"
    hdr += f"; @launch kernel={MAIN} grid=(256,1,1) block=(256,1,1) lds={NSLOT*STAGE}\n"
    for k in extra_post:
        hdr += k + "\n"
    a(hdr.rstrip("\n"))
    a('.amdgcn_target "amdgcn-amd-amdhsa--gfx950"')
    a(".text")
    gen_gemm(a, MAIN, fold)
    gen_prep(a, "prep_kernel", fold)
    descriptor(a, MAIN, 224, 64)
    descriptor(a, "prep_kernel", 64, 80)
    open(path, "w").write(a.text())

if __name__ == "__main__":
    gen("v1_fold.s", fold=1)
    gen("v1_exact.s", fold=0)
```

```python
import sys
from asmlib import *

M, K, N = 2048, 1024, 3584
MT, NT, KS = 128, 224, 64
BLK = 8 * NT * 16
WS_W = 0
WS_XS = 8 << 20
STAGE = 16384 + BLK
NSLOT = 3

def gen_prep(a, name, fold):
    kernel_begin(a, name)
    a.i("s_cmp_ge_u32 s2, 256")
    a.i("s_cbranch_scc1 L_prep_end")
    a.i("s_load_dwordx8 s[4:11], s[0:1], 0")
    a.i("s_load_dwordx2 s[12:13], s[0:1], 32")
    a.i("s_load_dwordx2 s[14:15], s[0:1], 56")
    a.i("s_and_b32 s16, s2, 15")
    a.i("s_lshr_b32 s17, s2, 4")
    a.i("v_lshrrev_b32 v1, 8, v0")
    a.i("v_and_b32 v2, 0xff, v0")
    a.i("v_readfirstlane_b32 s18, v1")
    a.i("v_cmp_gt_u32 vcc, 96, v2")
    a.i("v_subrev_u32 v3, 96, v2")
    a.i("s_nop 0")
    a.i("v_cndmask_b32 v3, v3, v2, vcc")
    a.i("v_cndmask_b32 v4, 1, 0, vcc")
    a.i("v_lshrrev_b32 v5, 5, v3")
    a.i("v_lshlrev_b32 v5, 1, v5")
    a.i("v_bfe_u32 v6, v3, 2, 1")
    a.i("v_add_u32 v5, v5, v6")
    a.i("v_bfe_u32 v6, v3, 3, 2")
    a.i("v_subrev_u32 v7, 192, v2")
    a.i("v_lshrrev_b32 v8, 4, v7")
    a.i("v_bfe_u32 v9, v7, 2, 2")
    a.i("v_cmp_le_u32 vcc, 192, v2")
    a.i("s_nop 1")
    a.i("v_cndmask_b32 v4, v4, v8, vcc")
    a.i("v_cndmask_b32 v6, v6, v9, vcc")
    a.i("v_mov_b32 v10, 6")
    a.i("v_cndmask_b32 v5, v5, v10, vcc")
    a.i("v_mul_u32_u24 v4, 112, v4")
    a.i("v_lshlrev_b32 v5, 4, v5")
    a.i("v_lshlrev_b32 v6, 2, v6")
    a.i("v_and_b32 v7, 3, v2")
    a.i("v_add3_u32 v4, v4, v5, v6")
    a.i("v_add_u32 v4, v4, v7")
    a.i("v_lshlrev_b32 v4, 4, v4")
    a.i("s_waitcnt lgkmcnt(0)")
    srd(a, 20, 6, K * N * 4)
    srd(a, 24, 8, 8 * N * 2)
    srd(a, 28, 10, 8 * N * 2)
    srd(a, 32, 14, 16 << 20)
    srd(a, 36, 4, M * K * 2)
    srd(a, 40, 12, K * 2)
    a.i("s_lshl_b32 s19, s17, 6")
    a.i("s_lshl_b32 s44, s18, 3")
    a.i("s_add_u32 s19, s19, s44")
    a.i("s_mul_i32 s45, s19, 14336")
    a.i("s_mul_i32 s46, s16, 896")
    a.i("s_add_u32 s45, s45, s46")
    a.i("v_lshlrev_b32 v11, 2, v2")
    a.i("v_cmp_gt_u32 vcc, 224, v2")
    a.i("s_and_saveexec_b64 s[48:49], vcc")
    a.i("s_cbranch_execz L_prep_x")
    for i in range(4):
        for e in range(8):
            a.i(f"s_add_u32 s47, s45, {(16*i + e) * 14336}")
            a.i(f"buffer_load_dword v{32 + 8*i + e}, v11, s[20:23], s47 offen")
    a.i("s_lshr_b32 s50, s17, 1")
    a.i("s_mul_i32 s50, s50, 7168")
    a.i("s_mul_i32 s51, s16, 448")
    a.i("s_add_u32 s50, s50, s51")
    a.i("v_lshlrev_b32 v12, 1, v2")
    a.i("buffer_load_ushort v13, v12, s[24:27], s50 offen")
    a.i("buffer_load_ushort v14, v12, s[28:31], s50 offen")
    a.i("s_lshl_b32 s52, s19, 1")
    a.i("s_add_u32 s12, s12, s52")
    a.i("s_addc_u32 s13, s13, 0")
    for i in range(4):
        a.i(f"s_load_dwordx4 s[{56+4*i}:{59+4*i}], s[12:13], {32*i}")
    a.i("s_waitcnt vmcnt(0) lgkmcnt(0)")
    a.i("v_lshlrev_b32 v13, 16, v13")
    a.i("v_lshlrev_b32 v14, 16, v14")
    a.i(f"s_mul_i32 s53, s16, {16*BLK}")
    a.i(f"s_mul_i32 s54, s17, {BLK}")
    a.i("s_add_u32 s53, s53, s54")
    a.i("s_mul_i32 s54, s18, 3584")
    a.i("s_add_u32 s53, s53, s54")
    for i in range(4):
        for e in range(8):
            r = 32 + 8*i + e
            a.i(f"v_cvt_f32_i32 v{r}, v{r}")
            a.i(f"v_sub_f32 v{r}, v{r}, v14")
        for e in range(0, 8, 2):
            r = 32 + 8*i + e
            a.i(f"v_cvt_pk_bf16_f32 v16, v{r}, v{r+1}")
            a.i(f"v_lshlrev_b32 v{r}, 16, v16")
            a.i(f"v_and_b32 v{r+1}, 0xffff0000, v16")
        for e in range(8):
            r = 32 + 8*i + e
            a.i(f"v_mul_f32 v{r}, v{r}, v13")
        if fold:
            for e in range(8):
                r = 32 + 8*i + e
                sreg = 56 + 4*i + e // 2
                if e % 2 == 0:
                    a.i(f"s_lshl_b32 s72, s{sreg}, 16")
                else:
                    a.i(f"s_and_b32 s72, s{sreg}, 0xffff0000")
                a.i(f"v_mul_f32 v{r}, s72, v{r}")
        for e in range(0, 8, 2):
            r = 32 + 8*i + e
            a.i(f"v_cvt_pk_bf16_f32 v{16 + e//2}, v{r}, v{r+1}")
        a.i(f"s_add_u32 s55, s53, {2*i*3584}")
        a.i(f"buffer_store_dwordx4 v[16:19], v4, s[32:35], s55 offen")
        a.i("s_nop 1")
    a.label("L_prep_x")
    a.i("s_mov_b64 exec, s[48:49]")
    if not fold:
        for t in range(2):
            a.i(f"v_add_u32 v20, {512*t}, v0")
            a.i("v_and_b32 v21, 127, v20")
            a.i("v_lshlrev_b32 v21, 4, v21")
            a.i("v_lshrrev_b32 v22, 7, v20")
            a.i("s_lshl_b32 s56, s2, 3")
            a.i("v_add_u32 v22, s56, v22")
            a.i("v_lshlrev_b32 v22, 11, v22")
            a.i("v_add_u32 v22, v22, v21")
            a.i("buffer_load_dwordx4 v[24:27], v22, s[36:39], 0 offen")
            a.i("buffer_load_dwordx4 v[28:31], v21, s[40:43], 0 offen")
            a.i("s_waitcnt vmcnt(0)")
            for d in range(4):
                a.i(f"v_lshlrev_b32 v32, 16, v{24+d}")
                a.i(f"v_and_b32 v33, 0xffff0000, v{24+d}")
                a.i(f"v_lshlrev_b32 v34, 16, v{28+d}")
                a.i(f"v_and_b32 v35, 0xffff0000, v{28+d}")
                a.i("v_mul_f32 v32, v32, v34")
                a.i("v_mul_f32 v33, v33, v35")
                a.i(f"v_cvt_pk_bf16_f32 v{36+d}, v32, v33")
            a.i(f"s_mov_b32 s57, {WS_XS}")
            a.i("buffer_store_dwordx4 v[36:39], v22, s[32:35], s57 offen")
            a.i("s_nop 1")
    a.label("L_prep_end")
    a.i("s_endpgm")

def gen_gemm(a, name, fold, stamps=False, delta=None):
    ACC = 0
    XF = [112, 156]
    WF = [128, 172]
    VA = 200
    VB = 204
    VX0, VX1, VW = 206, 207, 208
    BX0, BX1, BW = 209, 210, 211
    VT = 212
    kernel_begin(a, name)
    a.i("s_cmp_ge_u32 s2, 256")
    a.i("s_cbranch_scc1 L_gemm_end")
    a.i("s_load_dwordx2 s[4:5], s[0:1], 0")
    a.i("s_load_dwordx2 s[6:7], s[0:1], 40")
    a.i("s_load_dwordx2 s[8:9], s[0:1], 56")
    if stamps:
        a.i("s_memrealtime s[60:61]")
    a.i(f"v_lshrrev_b32 v{VT}, 6, v0")
    a.i(f"v_and_b32 v{VT+1}, 63, v0")
    a.i(f"v_readfirstlane_b32 s16, v{VT}")
    a.i("s_and_b32 s17, s2, 7")
    a.i("s_lshr_b32 s18, s2, 3")
    a.i("s_and_b32 s19, s17, 1")
    a.i("s_lshl_b32 s19, s19, 3")
    a.i("s_lshr_b32 s20, s18, 2")
    a.i("s_add_u32 s19, s19, s20")
    a.i("s_lshr_b32 s20, s17, 1")
    a.i("s_lshl_b32 s20, s20, 2")
    a.i("s_and_b32 s21, s18, 3")
    a.i("s_add_u32 s20, s20, s21")
    L = VT + 1
    a.i(f"v_lshrrev_b32 v{VT+2}, 3, v{L}")
    a.i("s_lshl_b32 s22, s19, 7")
    a.i("s_lshl_b32 s23, s16, 5")
    a.i("s_add_u32 s22, s22, s23")
    a.i(f"v_add_u32 v{VT+2}, s22, v{VT+2}")
    a.i(f"v_lshlrev_b32 v{VT+2}, 11, v{VT+2}")
    a.i(f"v_and_b32 v{VT+3}, 7, v{L}")
    a.i(f"v_lshrrev_b32 v{VT+4}, 4, v{L}")
    a.i(f"v_xor_b32 v{VT+5}, v{VT+3}, v{VT+4}")
    a.i(f"v_xor_b32 v{VT+6}, 4, v{VT+5}")
    a.i(f"v_lshl_add_u32 v{VT+5}, v{VT+5}, 4, v{VT+2}")
    a.i(f"v_lshl_add_u32 v{VT+6}, v{VT+6}, 4, v{VT+2}")
    for j in range(4):
        a.i(f"v_add_u32 v{VA+j}, {j*8*2048 - j*1024}, v{VT+5+(j&1)}")
    a.i("s_mul_i32 s24, s16, 7168")
    a.i(f"v_lshlrev_b32 v{VB}, 4, v{L}")
    a.i(f"v_add_u32 v{VB}, s24, v{VB}")
    a.i(f"v_add_u32 v{VB+1}, 4096, v{VB}")
    a.i("s_lshr_b32 s25, s16, 1")
    a.i("s_and_b32 s26, s16, 1")
    a.i(f"v_and_b32 v{VT+2}, 15, v{L}")
    a.i(f"v_lshrrev_b32 v{VT+3}, 4, v{L}")
    a.i(f"v_lshrrev_b32 v{VT+4}, 1, v{VT+2}")
    a.i(f"v_xor_b32 v{VT+4}, v{VT+4}, v{VT+3}")
    a.i(f"v_lshlrev_b32 v{VT+4}, 4, v{VT+4}")
    a.i(f"v_lshl_add_u32 v{BX0}, v{VT+2}, 7, v{VT+4}")
    a.i("s_lshl_b32 s27, s25, 13")
    a.i(f"v_add_u32 v{BX0}, s27, v{BX0}")
    a.i(f"v_xor_b32 v{BX1}, 64, v{BX0}")
    a.i(f"v_mul_u32_u24 v{BW}, 3584, v{VT+3}")
    a.i(f"v_lshl_add_u32 v{BW}, v{VT+2}, 4, v{BW}")
    a.i("s_mul_i32 s28, s26, 1792")
    a.i("s_add_u32 s28, s28, 16384")
    a.i(f"v_add_u32 v{BW}, s28, v{BW}")
    a.i("s_lshl_b32 s29, s19, 7")
    a.i("s_lshl_b32 s30, s25, 6")
    a.i("s_add_u32 s29, s29, s30")
    a.i(f"v_add_u32 v{VT+7}, s29, v{VT+2}")
    a.i("s_mov_b32 s31, 7168")
    a.i(f"v_mul_lo_u32 v{VT+7}, v{VT+7}, s31")
    a.i("s_mul_i32 s32, s20, 448")
    a.i("s_mul_i32 s33, s26, 192")
    a.i("s_add_u32 s33, s33, s32")
    a.i(f"v_lshl_add_u32 v{VT+8}, v{VT+3}, 4, v{VT+7}")
    a.i(f"v_add_u32 v{VT+8}, s33, v{VT+8}")
    a.i("s_lshl_b32 s33, s26, 5")
    a.i("s_add_u32 s33, s33, s32")
    a.i("s_add_u32 s33, s33, 384")
    a.i(f"v_lshl_add_u32 v{VT+9}, v{VT+3}, 3, v{VT+7}")
    a.i(f"v_add_u32 v{VT+9}, s33, v{VT+9}")
    VO4, VO2 = VT + 8, VT + 9
    a.i("s_waitcnt lgkmcnt(0)")
    if fold:
        srd(a, 36, 4, M * K * 2)
    else:
        a.i(f"s_add_u32 s4, s8, {WS_XS}")
        a.i("s_addc_u32 s5, s9, 0")
        srd(a, 36, 4, M * K * 2)
    srd(a, 40, 8, K * N * 2)
    srd(a, 44, 6, M * N * 2)
    a.i("s_mov_b32 s48, 0")
    a.i(f"s_mul_i32 s49, s20, {16*BLK}")
    a.i("s_lshl_b32 s52, s16, 12")
    a.i("s_add_u32 s53, s24, 16384")
    def dma(slot_sreg, part):
        if part == 0:
            a.i(f"s_add_u32 m0, {slot_sreg}, s52")
            a.i("s_nop 0")
            for j in range(4):
                a.i(f"buffer_load_dwordx4 v{VA+j}, s[36:39], s48 offen offset:{j*1024} lds")
        elif part == 1:
            a.i(f"s_add_u32 m0, {slot_sreg}, s53")
            a.i("s_nop 0")
            for j in range(4):
                a.i(f"buffer_load_dwordx4 v{VB}, s[40:43], s49 offen offset:{j*1024} lds")
        else:
            a.i(f"s_add_u32 s54, {slot_sreg}, s53")
            a.i("s_add_u32 m0, s54, 4096")
            a.i("s_nop 0")
            for j in range(3):
                a.i(f"buffer_load_dwordx4 v{VB+1}, s[40:43], s49 offen offset:{j*1024} lds")
    def adv():
        a.i("s_add_u32 s48, s48, 128")
        a.i(f"s_add_u32 s49, s49, {BLK}")
    for st in range(3):
        a.i(f"s_mov_b32 s50, {st*STAGE}")
        for p in range(3):
            dma("s50", p)
        adv()
    for r in range(112):
        a.i(f"v_mov_b32 v{r}, 0")
    a.i(f"v_mov_b32 v{VX0}, v{BX0}")
    a.i(f"v_mov_b32 v{VX1}, v{BX1}")
    a.i(f"v_mov_b32 v{VW}, v{BW}")
    a.i("s_waitcnt vmcnt(22)")
    a.i("s_barrier")
    def reads(setn, h):
        out = []
        vx = VX1 if h else VX0
        order = [('x', 0), ('w', 0), ('x', 1), ('x', 2), ('x', 3)] + [('w', j) for j in range(1, 7)]
        for kind, idx in order:
            if kind == 'x':
                r = XF[setn] + 4*idx
                out.append(f"ds_read_b128 v[{r}:{r+3}], v{vx} offset:{idx*2048}")
            else:
                r = WF[setn] + 4*idx
                out.append(f"ds_read_b128 v[{r}:{r+3}], v{VW} offset:{h*14336 + idx*256}")
        return out
    def mfmas(setn):
        out = []
        for j in range(7):
            for i in range(4):
                c = ACC + (j*4 + i) * 4
                w = WF[setn] + 4*j
                x = XF[setn] + 4*i
                out.append(f"v_mfma_f32_16x16x32_bf16 v[{c}:{c+3}], v[{w}:{w+3}], v[{x}:{x+3}], v[{c}:{c+3}]")
        return out
    for r in reads(0, 0):
        a.i(r)
    a.i("s_mov_b32 s51, 0")
    a.i("s_mov_b32 s50, 0")
    a.i("s_waitcnt lgkmcnt(0)")
    a.label("L_loop")
    mm = mfmas(0); rr = reads(1, 1)
    for k, m_ in enumerate(mm):
        a.i(m_)
        if k % 2 == 0 and k // 2 < len(rr):
            a.i(rr[k // 2])
    a.i(f"s_add_u32 s55, s50, {STAGE}")
    a.i(f"s_cmp_eq_u32 s55, {NSLOT*STAGE}")
    a.i("s_cselect_b32 s55, 0, s55")
    a.i(f"v_add_u32 v{VX0}, s55, v{BX0}")
    a.i(f"v_add_u32 v{VX1}, s55, v{BX1}")
    a.i(f"v_add_u32 v{VW}, s55, v{BW}")
    a.i("s_cmp_lt_u32 s51, 13")
    a.i("s_cbranch_scc1 L_w1")
    a.i("s_waitcnt vmcnt(0)")
    a.label("L_w1")
    a.i("s_waitcnt vmcnt(11) lgkmcnt(0)")
    a.i("s_barrier")
    mm = mfmas(1); rr = reads(0, 0)
    for k, m_ in enumerate(mm):
        a.i(m_)
        if k % 2 == 0 and k // 2 < len(rr):
            a.i(rr[k // 2])
        if k in (3, 11, 19):
            lab = a.newlabel("L_nodma")
            a.i("s_cmp_lt_u32 s51, 13")
            a.i(f"s_cbranch_scc0 {lab}")
            dma("s50", {3: 0, 11: 1, 19: 2}[k])
            a.label(lab)
    adv()
    a.i("s_mov_b32 s50, s55")
    a.i("s_add_u32 s51, s51, 1")
    a.i("s_cmp_lt_u32 s51, 16")
    a.i("s_waitcnt lgkmcnt(0)")
    a.i("s_cbranch_scc1 L_loop")
    a.i("s_nop 7")
    a.i("s_nop 1")
    T0 = 112
    if delta is not None:
        import struct
        bits = struct.unpack('<I', struct.pack('<f', delta))[0]
        for r in range(112):
            a.i(f"v_add_f32 v{r}, {bits:#x}, v{r}")
    for i in range(4):
        a.i(f"s_mov_b32 s56, {i*16*7168}")
        for p in range(3):
            t = T0 + (i*3 + p) * 4
            c0 = ACC + ((2*p)*4 + i) * 4
            c1 = ACC + ((2*p+1)*4 + i) * 4
            a.i(f"v_cvt_pk_bf16_f32 v{t}, v{c0}, v{c0+1}")
            a.i(f"v_cvt_pk_bf16_f32 v{t+1}, v{c0+2}, v{c0+3}")
            a.i(f"v_cvt_pk_bf16_f32 v{t+2}, v{c1}, v{c1+1}")
            a.i(f"v_cvt_pk_bf16_f32 v{t+3}, v{c1+2}, v{c1+3}")
            a.i(f"buffer_store_dwordx4 v[{t}:{t+3}], v{VO4}, s[44:47], s56 offen offset:{64*p}")
        t = T0 + 48 + i*2
        c0 = ACC + (6*4 + i) * 4
        a.i(f"v_cvt_pk_bf16_f32 v{t}, v{c0}, v{c0+1}")
        a.i(f"v_cvt_pk_bf16_f32 v{t+1}, v{c0+2}, v{c0+3}")
        a.i(f"buffer_store_dwordx2 v[{t}:{t+1}], v{VO2}, s[44:47], s56 offen")
    a.label("L_gemm_end")
    a.i("s_endpgm")

LINES = {
    'p': "; @launch kernel=prep_kernel grid=(256,1,1) block=(512,1,1) lds=0",
    'g': f"; @launch kernel={MAIN} grid=(256,1,1) block=(256,1,1) lds={NSLOT*STAGE}",
    'e': "; @launch kernel=empty_kernel grid=(256,1,1) block=(64,1,1) lds=0",
}
def gen(path, fold=1, seq='pg', delta=None):
    a = Asm()
    hdr = HEADER
    for k in seq:
        hdr += LINES[k] + "\n"
    a(hdr.rstrip("\n"))
    a('.amdgcn_target "amdgcn-amd-amdhsa--gfx950"')
    a(".text")
    gen_gemm(a, MAIN, fold, delta=delta)
    gen_prep(a, "prep_kernel", fold)
    if 'e' in seq:
        kernel_begin(a, "empty_kernel")
        a.i("s_endpgm")
    descriptor(a, MAIN, 224, 64)
    descriptor(a, "prep_kernel", 64, 80)
    if 'e' in seq:
        descriptor(a, "empty_kernel", 8, 16)
    open(path, "w").write(a.text())

if __name__ == "__main__":
    gen("v1_fold.s", fold=1)
    gen("v1_exact.s", fold=0)
    for seq in ('epg', 'ppg', 'pgg', 'pge', 'eepg'):
        gen(f"v1_{seq}.s", fold=1, seq=seq)
    for d in (0.002, 0.004, 0.008, 0.016, 0.03, 0.06):
        gen(f"v1_d{int(d*1000)}.s", fold=0, delta=d)
```

```python
import sys
from asmlib import *

M, K, N = 2048, 1024, 3584
MT, NT, KS = 128, 224, 64
BLK = 8 * NT * 16
WS_W = 0
WS_XS = 8 << 20
STAGE = 16384 + BLK
NSLOT = 3

def stamp_store(a, sregs, slot, vt, ws_lo, ws_hi, tmp):
    a.i("s_waitcnt lgkmcnt(0)")
    a.i(f"s_add_u32 s{tmp}, s{ws_lo}, {(128 << 20) + slot * 65536}")
    a.i(f"s_addc_u32 s{tmp+1}, s{ws_hi}, 0")
    a.i(f"s_and_b32 s{tmp+1}, s{tmp+1}, 0xffff")
    a.i(f"s_mov_b32 s{tmp+2}, 65536")
    a.i(f"s_mov_b32 s{tmp+3}, 0x00020000")
    a.i(f"s_lshl_b32 s{tmp+4}, s2, 6")
    a.i(f"v_mov_b32 v{vt}, s{tmp+4}")
    for n, r in enumerate(sregs):
        a.i(f"v_mov_b32 v{vt+2}, s{r}")
        a.i(f"v_mov_b32 v{vt+3}, s{r+1}")
        a.i(f"buffer_store_dwordx2 v[{vt+2}:{vt+3}], v{vt}, s[{tmp}:{tmp+3}], 0 offen offset:{8*n}")
        a.i("s_nop 1")

def gen_prep(a, name, fold, stamps=False, pfl=''):
    kernel_begin(a, name)
    a.i("s_cmp_ge_u32 s2, 256")
    a.i("s_cbranch_scc1 L_prep_end")
    if stamps:
        a.i("s_memrealtime s[76:77]")
    a.i("s_load_dwordx8 s[4:11], s[0:1], 0")
    a.i("s_load_dwordx2 s[12:13], s[0:1], 32")
    a.i("s_load_dwordx2 s[14:15], s[0:1], 56")
    a.i("s_and_b32 s16, s2, 15")
    a.i("s_lshr_b32 s17, s2, 4")
    a.i("v_lshrrev_b32 v1, 8, v0")
    a.i("v_and_b32 v2, 0xff, v0")
    a.i("v_readfirstlane_b32 s18, v1")
    a.i("v_cmp_gt_u32 vcc, 96, v2")
    a.i("v_subrev_u32 v3, 96, v2")
    a.i("s_nop 0")
    a.i("v_cndmask_b32 v3, v3, v2, vcc")
    a.i("v_cndmask_b32 v4, 1, 0, vcc")
    a.i("v_lshrrev_b32 v5, 5, v3")
    a.i("v_lshlrev_b32 v5, 1, v5")
    a.i("v_bfe_u32 v6, v3, 2, 1")
    a.i("v_add_u32 v5, v5, v6")
    a.i("v_bfe_u32 v6, v3, 3, 2")
    a.i("v_subrev_u32 v7, 192, v2")
    a.i("v_lshrrev_b32 v8, 4, v7")
    a.i("v_bfe_u32 v9, v7, 2, 2")
    a.i("v_cmp_le_u32 vcc, 192, v2")
    a.i("s_nop 1")
    a.i("v_cndmask_b32 v4, v4, v8, vcc")
    a.i("v_cndmask_b32 v6, v6, v9, vcc")
    a.i("v_mov_b32 v10, 6")
    a.i("v_cndmask_b32 v5, v5, v10, vcc")
    a.i("v_mul_u32_u24 v4, 112, v4")
    a.i("v_lshlrev_b32 v5, 4, v5")
    a.i("v_lshlrev_b32 v6, 2, v6")
    a.i("v_and_b32 v7, 3, v2")
    a.i("v_add3_u32 v4, v4, v5, v6")
    a.i("v_add_u32 v4, v4, v7")
    a.i("v_lshlrev_b32 v4, 4, v4")
    a.i("s_waitcnt lgkmcnt(0)")
    srd(a, 20, 6, K * N * 4)
    srd(a, 24, 8, 8 * N * 2)
    srd(a, 28, 10, 8 * N * 2)
    srd(a, 32, 14, 16 << 20)
    srd(a, 36, 4, M * K * 2)
    srd(a, 40, 12, K * 2)
    a.i("s_lshl_b32 s19, s17, 6")
    a.i("s_lshl_b32 s44, s18, 3")
    a.i("s_add_u32 s19, s19, s44")
    a.i("s_mul_i32 s45, s19, 14336")
    a.i("s_mul_i32 s46, s16, 896")
    a.i("s_add_u32 s45, s45, s46")
    a.i("v_lshlrev_b32 v11, 2, v2")
    a.i("v_cmp_gt_u32 vcc, 224, v2")
    a.i("s_and_saveexec_b64 s[48:49], vcc")
    a.i("s_cbranch_execz L_prep_x")
    for i in range(4):
        for e in range(8):
            a.i(f"s_add_u32 s47, s45, {(16*i + e) * 14336}")
            a.i(f"buffer_load_dword v{32 + 8*i + e}, v11, s[20:23], s47 offen")
    a.i("s_lshr_b32 s50, s17, 1")
    a.i("s_mul_i32 s50, s50, 7168")
    a.i("s_mul_i32 s51, s16, 448")
    a.i("s_add_u32 s50, s50, s51")
    a.i("v_lshlrev_b32 v12, 1, v2")
    a.i("buffer_load_ushort v13, v12, s[24:27], s50 offen")
    a.i("buffer_load_ushort v14, v12, s[28:31], s50 offen")
    a.i("s_lshl_b32 s52, s19, 1")
    a.i("s_add_u32 s12, s12, s52")
    a.i("s_addc_u32 s13, s13, 0")
    for i in range(4):
        a.i(f"s_load_dwordx4 s[{56+4*i}:{59+4*i}], s[12:13], {32*i}")
    a.i("s_waitcnt vmcnt(0) lgkmcnt(0)")
    if stamps:
        a.i("s_memrealtime s[78:79]")
    a.i("v_lshlrev_b32 v13, 16, v13")
    a.i("v_lshlrev_b32 v14, 16, v14")
    a.i(f"s_mul_i32 s53, s16, {16*BLK}")
    a.i(f"s_mul_i32 s54, s17, {BLK}")
    a.i("s_add_u32 s53, s53, s54")
    a.i("s_mul_i32 s54, s18, 3584")
    a.i("s_add_u32 s53, s53, s54")
    for i in range(4):
        for e in range(8):
            r = 32 + 8*i + e
            a.i(f"v_cvt_f32_i32 v{r}, v{r}")
            a.i(f"v_sub_f32 v{r}, v{r}, v14")
        for e in range(0, 8, 2):
            r = 32 + 8*i + e
            a.i(f"v_cvt_pk_bf16_f32 v16, v{r}, v{r+1}")
            a.i(f"v_lshlrev_b32 v{r}, 16, v16")
            a.i(f"v_and_b32 v{r+1}, 0xffff0000, v16")
        for e in range(8):
            r = 32 + 8*i + e
            a.i(f"v_mul_f32 v{r}, v{r}, v13")
        if fold:
            for e in range(8):
                r = 32 + 8*i + e
                sreg = 56 + 4*i + e // 2
                if e % 2 == 0:
                    a.i(f"s_lshl_b32 s72, s{sreg}, 16")
                else:
                    a.i(f"s_and_b32 s72, s{sreg}, 0xffff0000")
                a.i(f"v_mul_f32 v{r}, s72, v{r}")
        for e in range(0, 8, 2):
            r = 32 + 8*i + e
            a.i(f"v_cvt_pk_bf16_f32 v{16 + e//2}, v{r}, v{r+1}")
        a.i(f"s_add_u32 s55, s53, {2*i*3584}")
        a.i(f"buffer_store_dwordx4 v[16:19], v4, s[32:35], s55 offen {pfl}")
        a.i("s_nop 1")
    a.label("L_prep_x")
    a.i("s_mov_b64 exec, s[48:49]")
    if not fold:
        for t in range(2):
            a.i(f"v_add_u32 v20, {512*t}, v0")
            a.i("v_and_b32 v21, 127, v20")
            a.i("v_lshlrev_b32 v21, 4, v21")
            a.i("v_lshrrev_b32 v22, 7, v20")
            a.i("s_lshl_b32 s56, s2, 3")
            a.i("v_add_u32 v22, s56, v22")
            a.i("v_lshlrev_b32 v22, 11, v22")
            a.i("v_add_u32 v22, v22, v21")
            a.i("buffer_load_dwordx4 v[24:27], v22, s[36:39], 0 offen")
            a.i("buffer_load_dwordx4 v[28:31], v21, s[40:43], 0 offen")
            a.i("s_waitcnt vmcnt(0)")
            for d in range(4):
                a.i(f"v_lshlrev_b32 v32, 16, v{24+d}")
                a.i(f"v_and_b32 v33, 0xffff0000, v{24+d}")
                a.i(f"v_lshlrev_b32 v34, 16, v{28+d}")
                a.i(f"v_and_b32 v35, 0xffff0000, v{28+d}")
                a.i("v_mul_f32 v32, v32, v34")
                a.i("v_mul_f32 v33, v33, v35")
                a.i(f"v_cvt_pk_bf16_f32 v{36+d}, v32, v33")
            a.i(f"s_mov_b32 s57, {WS_XS}")
            a.i("buffer_store_dwordx4 v[36:39], v22, s[32:35], s57 offen")
            a.i("s_nop 1")
    if stamps:
        a.i("s_waitcnt vmcnt(0)")
        a.i("s_memrealtime s[80:81]")
        a.i("v_cmp_eq_u32 vcc, 0, v0")
        a.i("s_and_saveexec_b64 s[48:49], vcc")
        a.i("s_cbranch_execz L_prep_end")
        stamp_store(a, [76, 78, 80], 0, 20, 14, 15, 84)
    a.label("L_prep_end")
    a.i("s_endpgm")

def gen_gemm(a, name, fold, stamps=False, delta=None, gfl=''):
    ACC = 0
    XF = [112, 156]
    WF = [128, 172]
    VA = 200
    VB = 204
    VX0, VX1, VW = 206, 207, 208
    BX0, BX1, BW = 209, 210, 211
    VT = 212
    kernel_begin(a, name)
    a.i("s_cmp_ge_u32 s2, 256")
    a.i("s_cbranch_scc1 L_gemm_end")
    a.i("s_load_dwordx2 s[4:5], s[0:1], 0")
    a.i("s_load_dwordx2 s[6:7], s[0:1], 40")
    a.i("s_load_dwordx2 s[8:9], s[0:1], 56")
    if stamps:
        a.i("s_memrealtime s[60:61]")
    a.i(f"v_lshrrev_b32 v{VT}, 6, v0")
    a.i(f"v_and_b32 v{VT+1}, 63, v0")
    a.i(f"v_readfirstlane_b32 s16, v{VT}")
    a.i("s_and_b32 s17, s2, 7")
    a.i("s_lshr_b32 s18, s2, 3")
    a.i("s_and_b32 s19, s17, 1")
    a.i("s_lshl_b32 s19, s19, 3")
    a.i("s_lshr_b32 s20, s18, 2")
    a.i("s_add_u32 s19, s19, s20")
    a.i("s_lshr_b32 s20, s17, 1")
    a.i("s_lshl_b32 s20, s20, 2")
    a.i("s_and_b32 s21, s18, 3")
    a.i("s_add_u32 s20, s20, s21")
    L = VT + 1
    a.i(f"v_lshrrev_b32 v{VT+2}, 3, v{L}")
    a.i("s_lshl_b32 s22, s19, 7")
    a.i("s_lshl_b32 s23, s16, 5")
    a.i("s_add_u32 s22, s22, s23")
    a.i(f"v_add_u32 v{VT+2}, s22, v{VT+2}")
    a.i(f"v_lshlrev_b32 v{VT+2}, 11, v{VT+2}")
    a.i(f"v_and_b32 v{VT+3}, 7, v{L}")
    a.i(f"v_lshrrev_b32 v{VT+4}, 4, v{L}")
    a.i(f"v_xor_b32 v{VT+5}, v{VT+3}, v{VT+4}")
    a.i(f"v_xor_b32 v{VT+6}, 4, v{VT+5}")
    a.i(f"v_lshl_add_u32 v{VT+5}, v{VT+5}, 4, v{VT+2}")
    a.i(f"v_lshl_add_u32 v{VT+6}, v{VT+6}, 4, v{VT+2}")
    for j in range(4):
        a.i(f"v_add_u32 v{VA+j}, {j*8*2048 - j*1024}, v{VT+5+(j&1)}")
    a.i("s_mul_i32 s24, s16, 7168")
    a.i(f"v_lshlrev_b32 v{VB}, 4, v{L}")
    a.i(f"v_add_u32 v{VB}, s24, v{VB}")
    a.i(f"v_add_u32 v{VB+1}, 4096, v{VB}")
    a.i("s_lshr_b32 s25, s16, 1")
    a.i("s_and_b32 s26, s16, 1")
    a.i(f"v_and_b32 v{VT+2}, 15, v{L}")
    a.i(f"v_lshrrev_b32 v{VT+3}, 4, v{L}")
    a.i(f"v_lshrrev_b32 v{VT+4}, 1, v{VT+2}")
    a.i(f"v_xor_b32 v{VT+4}, v{VT+4}, v{VT+3}")
    a.i(f"v_lshlrev_b32 v{VT+4}, 4, v{VT+4}")
    a.i(f"v_lshl_add_u32 v{BX0}, v{VT+2}, 7, v{VT+4}")
    a.i("s_lshl_b32 s27, s25, 13")
    a.i(f"v_add_u32 v{BX0}, s27, v{BX0}")
    a.i(f"v_xor_b32 v{BX1}, 64, v{BX0}")
    a.i(f"v_mul_u32_u24 v{BW}, 3584, v{VT+3}")
    a.i(f"v_lshl_add_u32 v{BW}, v{VT+2}, 4, v{BW}")
    a.i("s_mul_i32 s28, s26, 1792")
    a.i("s_add_u32 s28, s28, 16384")
    a.i(f"v_add_u32 v{BW}, s28, v{BW}")
    a.i("s_lshl_b32 s29, s19, 7")
    a.i("s_lshl_b32 s30, s25, 6")
    a.i("s_add_u32 s29, s29, s30")
    a.i(f"v_add_u32 v{VT+7}, s29, v{VT+2}")
    a.i("s_mov_b32 s31, 7168")
    a.i(f"v_mul_lo_u32 v{VT+7}, v{VT+7}, s31")
    a.i("s_mul_i32 s32, s20, 448")
    a.i("s_mul_i32 s33, s26, 192")
    a.i("s_add_u32 s33, s33, s32")
    a.i(f"v_lshl_add_u32 v{VT+8}, v{VT+3}, 4, v{VT+7}")
    a.i(f"v_add_u32 v{VT+8}, s33, v{VT+8}")
    a.i("s_lshl_b32 s33, s26, 5")
    a.i("s_add_u32 s33, s33, s32")
    a.i("s_add_u32 s33, s33, 384")
    a.i(f"v_lshl_add_u32 v{VT+9}, v{VT+3}, 3, v{VT+7}")
    a.i(f"v_add_u32 v{VT+9}, s33, v{VT+9}")
    VO4, VO2 = VT + 8, VT + 9
    a.i("s_waitcnt lgkmcnt(0)")
    if fold:
        srd(a, 36, 4, M * K * 2)
    else:
        a.i(f"s_add_u32 s4, s8, {WS_XS}")
        a.i("s_addc_u32 s5, s9, 0")
        srd(a, 36, 4, M * K * 2)
    srd(a, 40, 8, K * N * 2)
    srd(a, 44, 6, M * N * 2)
    a.i("s_mov_b32 s48, 0")
    a.i(f"s_mul_i32 s49, s20, {16*BLK}")
    a.i("s_lshl_b32 s52, s16, 12")
    a.i("s_add_u32 s53, s24, 16384")
    def dma(slot_sreg, part):
        if part == 0:
            a.i(f"s_add_u32 m0, {slot_sreg}, s52")
            a.i("s_nop 0")
            for j in range(4):
                a.i(f"buffer_load_dwordx4 v{VA+j}, s[36:39], s48 offen offset:{j*1024} lds")
        elif part == 1:
            a.i(f"s_add_u32 m0, {slot_sreg}, s53")
            a.i("s_nop 0")
            for j in range(4):
                a.i(f"buffer_load_dwordx4 v{VB}, s[40:43], s49 offen offset:{j*1024} lds")
        else:
            a.i(f"s_add_u32 s54, {slot_sreg}, s53")
            a.i("s_add_u32 m0, s54, 4096")
            a.i("s_nop 0")
            for j in range(3):
                a.i(f"buffer_load_dwordx4 v{VB+1}, s[40:43], s49 offen offset:{j*1024} lds")
    def adv():
        a.i("s_add_u32 s48, s48, 128")
        a.i(f"s_add_u32 s49, s49, {BLK}")
    for st in range(3):
        a.i(f"s_mov_b32 s50, {st*STAGE}")
        for p in range(3):
            dma("s50", p)
        adv()
    for r in range(112):
        a.i(f"v_mov_b32 v{r}, 0")
    a.i(f"v_mov_b32 v{VX0}, v{BX0}")
    a.i(f"v_mov_b32 v{VX1}, v{BX1}")
    a.i(f"v_mov_b32 v{VW}, v{BW}")
    a.i("s_waitcnt vmcnt(22)")
    a.i("s_barrier")
    if stamps:
        a.i("s_memrealtime s[62:63]")
        a.i("s_memtime s[68:69]")
    def reads(setn, h):
        out = []
        vx = VX1 if h else VX0
        order = [('x', 0), ('w', 0), ('x', 1), ('x', 2), ('x', 3)] + [('w', j) for j in range(1, 7)]
        for kind, idx in order:
            if kind == 'x':
                r = XF[setn] + 4*idx
                out.append(f"ds_read_b128 v[{r}:{r+3}], v{vx} offset:{idx*2048}")
            else:
                r = WF[setn] + 4*idx
                out.append(f"ds_read_b128 v[{r}:{r+3}], v{VW} offset:{h*14336 + idx*256}")
        return out
    def mfmas(setn):
        out = []
        for j in range(7):
            for i in range(4):
                c = ACC + (j*4 + i) * 4
                w = WF[setn] + 4*j
                x = XF[setn] + 4*i
                out.append(f"v_mfma_f32_16x16x32_bf16 v[{c}:{c+3}], v[{w}:{w+3}], v[{x}:{x+3}], v[{c}:{c+3}]")
        return out
    for r in reads(0, 0):
        a.i(r)
    a.i("s_mov_b32 s51, 0")
    a.i("s_mov_b32 s50, 0")
    a.i("s_waitcnt lgkmcnt(0)")
    a.label("L_loop")
    mm = mfmas(0); rr = reads(1, 1)
    for k, m_ in enumerate(mm):
        a.i(m_)
        if k % 2 == 0 and k // 2 < len(rr):
            a.i(rr[k // 2])
    a.i(f"s_add_u32 s55, s50, {STAGE}")
    a.i(f"s_cmp_eq_u32 s55, {NSLOT*STAGE}")
    a.i("s_cselect_b32 s55, 0, s55")
    a.i(f"v_add_u32 v{VX0}, s55, v{BX0}")
    a.i(f"v_add_u32 v{VX1}, s55, v{BX1}")
    a.i(f"v_add_u32 v{VW}, s55, v{BW}")
    a.i("s_cmp_lt_u32 s51, 13")
    a.i("s_cbranch_scc1 L_w1")
    a.i("s_waitcnt vmcnt(0)")
    a.label("L_w1")
    a.i("s_waitcnt vmcnt(11) lgkmcnt(0)")
    a.i("s_barrier")
    mm = mfmas(1); rr = reads(0, 0)
    for k, m_ in enumerate(mm):
        a.i(m_)
        if k % 2 == 0 and k // 2 < len(rr):
            a.i(rr[k // 2])
        if k in (3, 11, 19):
            lab = a.newlabel("L_nodma")
            a.i("s_cmp_lt_u32 s51, 13")
            a.i(f"s_cbranch_scc0 {lab}")
            dma("s50", {3: 0, 11: 1, 19: 2}[k])
            a.label(lab)
    adv()
    a.i("s_mov_b32 s50, s55")
    a.i("s_add_u32 s51, s51, 1")
    a.i("s_cmp_lt_u32 s51, 16")
    a.i("s_waitcnt lgkmcnt(0)")
    a.i("s_cbranch_scc1 L_loop")
    if stamps:
        a.i("s_memrealtime s[64:65]")
        a.i("s_memtime s[70:71]")
    a.i("s_nop 7")
    a.i("s_nop 1")
    T0 = 112
    if delta is not None:
        import struct
        bits = struct.unpack('<I', struct.pack('<f', delta))[0]
        for r in range(112):
            a.i(f"v_add_f32 v{r}, {bits:#x}, v{r}")
    for i in range(4):
        a.i(f"s_mov_b32 s56, {i*16*7168}")
        for p in range(3):
            t = T0 + (i*3 + p) * 4
            c0 = ACC + ((2*p)*4 + i) * 4
            c1 = ACC + ((2*p+1)*4 + i) * 4
            a.i(f"v_cvt_pk_bf16_f32 v{t}, v{c0}, v{c0+1}")
            a.i(f"v_cvt_pk_bf16_f32 v{t+1}, v{c0+2}, v{c0+3}")
            a.i(f"v_cvt_pk_bf16_f32 v{t+2}, v{c1}, v{c1+1}")
            a.i(f"v_cvt_pk_bf16_f32 v{t+3}, v{c1+2}, v{c1+3}")
            a.i(f"buffer_store_dwordx4 v[{t}:{t+3}], v{VO4}, s[44:47], s56 offen offset:{64*p} {gfl}")
        t = T0 + 48 + i*2
        c0 = ACC + (6*4 + i) * 4
        a.i(f"v_cvt_pk_bf16_f32 v{t}, v{c0}, v{c0+1}")
        a.i(f"v_cvt_pk_bf16_f32 v{t+1}, v{c0+2}, v{c0+3}")
        a.i(f"buffer_store_dwordx2 v[{t}:{t+1}], v{VO2}, s[44:47], s56 offen {gfl}")
    if stamps:
        a.i("s_waitcnt vmcnt(0)")
        a.i("s_memrealtime s[66:67]")
        a.i(f"v_cmp_eq_u32 vcc, 0, v{VT+1}")
        a.i("s_cmp_eq_u32 s16, 0")
        a.i("s_cbranch_scc0 L_gemm_end")
        a.i("s_and_saveexec_b64 s[48:49], vcc")
        a.i("s_cbranch_execz L_gemm_end")
        stamp_store(a, [60, 62, 64, 66, 68, 70], 1, 200, 8, 9, 72)
    a.label("L_gemm_end")
    a.i("s_endpgm")

def gen_report(a, name, A, B, amp):
    kernel_begin(a, name)
    a.i("s_cmp_lg_u32 s2, 0")
    a.i("s_cbranch_scc1 L_rep_end")
    a.i("s_load_dwordx2 s[4:5], s[0:1], 56")
    a.i("s_waitcnt lgkmcnt(0)")
    a.i("s_mov_b32 s24, s4")
    a.i("s_and_b32 s25, s5, 0xffff")
    a.i("s_mov_b32 s26, 0x10000000")
    a.i("s_mov_b32 s27, 0x00020000")
    a.i("v_lshlrev_b32 v1, 6, v0")
    for (slot, field, op), dst, vb in ((A, 20, 2), (B, 21, 6)):
        a.i(f"s_mov_b32 s10, {(128 << 20) + slot * 65536 + field * 8}")
        for q in range(4):
            a.i(f"buffer_load_dword v{vb+q}, v1, s[24:27], s10 offen")
            a.i("s_add_u32 s10, s10, 4096")
    a.i("s_waitcnt vmcnt(0)")
    for (slot, field, op), dst, vb in ((A, 20, 2), (B, 21, 6)):
        a.i(f"v_{op}_u32 v{vb}, v{vb}, v{vb+1}")
        a.i(f"v_{op}_u32 v{vb+2}, v{vb+2}, v{vb+3}")
        a.i(f"v_{op}_u32 v{vb}, v{vb}, v{vb+2}")
        a.i(f"s_mov_b32 s{dst}, {'-1' if op == 'min' else '0'}")
        a.i("s_mov_b32 s10, 0")
        lab = a.newlabel("L_rep")
        a.label(lab)
        a.i(f"v_readlane_b32 s11, v{vb}, s10")
        a.i("s_nop 3")
        a.i(f"s_{op}_u32 s{dst}, s{dst}, s11")
        a.i("s_add_u32 s10, s10, 1")
        a.i("s_cmp_lt_u32 s10, 64")
        a.i(f"s_cbranch_scc1 {lab}")
    a.i("s_sub_u32 s22, s21, s20")
    a.i("s_min_u32 s22, s22, 5000")
    a.i(f"s_mul_i32 s22, s22, {amp}")
    a.i("s_memrealtime s[12:13]")
    a.i("s_waitcnt lgkmcnt(0)")
    a.i("s_add_u32 s22, s22, s12")
    a.label("L_spin")
    a.i("s_memrealtime s[14:15]")
    a.i("s_waitcnt lgkmcnt(0)")
    a.i("s_sub_u32 s16, s22, s14")
    a.i("s_cmp_gt_i32 s16, 0")
    a.i("s_cbranch_scc1 L_spin")
    a.label("L_rep_end")
    a.i("s_endpgm")

LINES = {
    'r': "; @launch kernel=report_kernel grid=(1,1,1) block=(64,1,1) lds=0",
    'p': "; @launch kernel=prep_kernel grid=(256,1,1) block=(512,1,1) lds=0",
    'g': f"; @launch kernel={MAIN} grid=(256,1,1) block=(256,1,1) lds={NSLOT*STAGE}",
    'e': "; @launch kernel=empty_kernel grid=(256,1,1) block=(64,1,1) lds=0",
}
def gen(path, fold=1, seq='pg', delta=None, stamps=False, rep=None, pfl='', gfl=''):
    a = Asm()
    hdr = HEADER
    for k in seq:
        hdr += LINES[k] + "\n"
    a(hdr.rstrip("\n"))
    a('.amdgcn_target "amdgcn-amd-amdhsa--gfx950"')
    a(".text")
    gen_gemm(a, MAIN, fold, delta=delta, stamps=stamps, gfl=gfl)
    gen_prep(a, "prep_kernel", fold, stamps=stamps, pfl=pfl)
    if 'r' in seq:
        gen_report(a, "report_kernel", *rep)
    if 'e' in seq:
        kernel_begin(a, "empty_kernel")
        a.i("s_endpgm")
    descriptor(a, MAIN, 224, 96)
    descriptor(a, "prep_kernel", 64, 96)
    if 'e' in seq:
        descriptor(a, "empty_kernel", 8, 16)
    if 'r' in seq:
        descriptor(a, "report_kernel", 16, 32)
    open(path, "w").write(a.text())

if __name__ == "__main__":
    gen("v1_fold.s", fold=1)
    gen("x_gsc.s", gfl='sc0 sc1')
    gen("x_gnt.s", gfl='nt')
    gen("x_psc.s", pfl='sc0 sc1')
    gen("x_both.s", pfl='sc0 sc1', gfl='sc0 sc1')
    gen("x_pgee.s", seq='pgee')
```

```python
HEADER = """; Kernarg layout for this problem (64 bytes, ptrs only, base s[0:1]):
"""
MAIN = "standalone__weight_only_int_omniquant__prompt_kernel"

class Asm:
    def __init__(self):
        self.lines = []
        self.uid = 0
    def __call__(self, s=""):
        for l in s.split("\n"):
            self.lines.append(l)
    def i(self, s):
        self.lines.append("    " + s)
    def label(self, name):
        self.lines.append(name + ":")
    def newlabel(self, p="L"):
        self.uid += 1
        return f"{p}_{self.uid}"
    def text(self):
        return "\n".join(self.lines) + "\n"

def kernel_begin(a, name):
    a(".p2align 8")
    a(f".globl {name}")
    a(f".type {name},@function")
    a.label(name)

def descriptor(a, name, vgpr, sgpr, accum=None, wg_y=False, denorm32=None):
    if accum is None:
        accum = (vgpr + 3) // 4 * 4
    a('.section .rodata,"a"')
    a(".p2align 6")
    a(f".amdhsa_kernel {name}")
    a(f"  .amdhsa_next_free_vgpr {vgpr}")
    a(f"  .amdhsa_next_free_sgpr {sgpr}")
    a(f"  .amdhsa_accum_offset {accum}")
    a("  .amdhsa_group_segment_fixed_size 0")
    a("  .amdhsa_kernarg_size 64")
    a("  .amdhsa_user_sgpr_count 2")
    a("  .amdhsa_user_sgpr_kernarg_segment_ptr 1")
    a("  .amdhsa_system_sgpr_workgroup_id_x 1")
    if wg_y:
        a("  .amdhsa_system_sgpr_workgroup_id_y 1")
    if denorm32 is not None:
        a(f"  .amdhsa_float_denorm_mode_32 {denorm32}")
    a(".end_amdhsa_kernel")
    a(".text")

def srd(a, d, base, nbytes):
    a.i(f"s_mov_b32 s{d}, s{base}")
    a.i(f"s_and_b32 s{d+1}, s{base+1}, 0xffff")
    a.i(f"s_mov_b32 s{d+2}, {nbytes}")
    a.i(f"s_mov_b32 s{d+3}, 0x00020000")


def gen_report(a, name, A, B, amp):
    noA = A is None
    if noA:
        A = B
    kernel_begin(a, name)
    a.i("s_cmp_lg_u32 s2, 0")
    a.i("s_cbranch_scc1 L_rep_end")
    a.i("s_load_dwordx2 s[4:5], s[0:1], 56")
    a.i("s_waitcnt lgkmcnt(0)")
    a.i("s_mov_b32 s24, s4")
    a.i("s_and_b32 s25, s5, 0xffff")
    a.i("s_mov_b32 s26, 0x10000000")
    a.i("s_mov_b32 s27, 0x00020000")
    a.i("v_lshlrev_b32 v1, 6, v0")
    for (slot, field, op), dst, vb in ((A, 20, 2), (B, 21, 6)):
        a.i(f"s_mov_b32 s10, {(128 << 20) + slot * 65536 + field * 8}")
        for q in range(4):
            a.i(f"buffer_load_dword v{vb+q}, v1, s[24:27], s10 offen")
            a.i("s_add_u32 s10, s10, 4096")
    a.i("s_waitcnt vmcnt(0)")
    for (slot, field, op), dst, vb in ((A, 20, 2), (B, 21, 6)):
        a.i(f"v_{op}_u32 v{vb}, v{vb}, v{vb+1}")
        a.i(f"v_{op}_u32 v{vb+2}, v{vb+2}, v{vb+3}")
        a.i(f"v_{op}_u32 v{vb}, v{vb}, v{vb+2}")
        a.i(f"s_mov_b32 s{dst}, {'-1' if op == 'min' else '0'}")
        a.i("s_mov_b32 s10, 0")
        lab = a.newlabel("L_rep")
        a.label(lab)
        a.i(f"v_readlane_b32 s11, v{vb}, s10")
        a.i("s_nop 3")
        a.i(f"s_{op}_u32 s{dst}, s{dst}, s11")
        a.i("s_add_u32 s10, s10, 1")
        a.i("s_cmp_lt_u32 s10, 64")
        a.i(f"s_cbranch_scc1 {lab}")
    if noA:
        a.i("s_mov_b32 s20, 0")
    a.i("s_sub_u32 s22, s21, s20")
    a.i("s_min_u32 s22, s22, 50000" if amp == 1 else "s_min_u32 s22, s22, 5000")
    a.i(f"s_mul_i32 s22, s22, {amp}")
    a.i("s_memrealtime s[12:13]")
    a.i("s_waitcnt lgkmcnt(0)")
    a.i("s_add_u32 s22, s22, s12")
    a.label("L_spin")
    a.i("s_memrealtime s[14:15]")
    a.i("s_waitcnt lgkmcnt(0)")
    a.i("s_sub_u32 s16, s22, s14")
    a.i("s_cmp_gt_i32 s16, 0")
    a.i("s_cbranch_scc1 L_spin")
    a.label("L_rep_end")
    a.i("s_endpgm")
```

```python
import sys, struct
from asmlib import *

M, K, N = 2048, 1024, 3584
BLK = 8 * 112 * 16
SLAB = 16 * BLK
STAGE = 32768 + BLK
NSLOT = 3
FLAG_LDS = NSLOT * STAGE
LDS = FLAG_LDS + 64
WS_FLAGS = 8 << 20
STAMP_BASE = 128 << 20
S_X, S_QW, S_SC, S_ZE, S_AC, S_OUT, S_DBG, S_WS = 4, 6, 8, 10, 12, 14, 16, 18
S_MI, S_NJ, S_W = 20, 21, 22
R_X, R_W, R_OUT, R_QW, R_SC, R_ZE, R_AC, R_DBG = 24, 28, 32, 36, 40, 44, 48, 52

def stamp(a, on, reg):
    if on:
        a.i(f"s_memrealtime s[{reg}:{reg+1}]")

def stamp_store(a, sregs, slot, vt, tmp):
    a.i("s_waitcnt lgkmcnt(0)")
    a.i(f"s_add_u32 s{tmp}, s{S_WS}, {STAMP_BASE + slot * 65536}")
    a.i(f"s_addc_u32 s{tmp+1}, s{S_WS+1}, 0")
    a.i(f"s_and_b32 s{tmp+1}, s{tmp+1}, 0xffff")
    a.i(f"s_mov_b32 s{tmp+2}, 65536")
    a.i(f"s_mov_b32 s{tmp+3}, 0x00020000")
    a.i(f"s_lshl_b32 s{tmp+4}, s2, 6")
    a.i(f"v_mov_b32 v{vt}, s{tmp+4}")
    for n, r in enumerate(sregs):
        a.i(f"v_mov_b32 v{vt+2}, s{r}")
        a.i(f"v_mov_b32 v{vt+3}, s{r+1}")
        a.i(f"buffer_store_dwordx2 v[{vt+2}:{vt+3}], v{vt}, s[{tmp}:{tmp+3}], 0 offen offset:{8*n}")
        a.i("s_nop 1")

def emit_srds(a, names):
    table = {'x': (R_X, S_X, M*K*2), 'w': (R_W, S_WS, WS_FLAGS + 32768), 'out': (R_OUT, S_OUT, M*N*2), 'qw': (R_QW, S_QW, K*N*4),
             'sc': (R_SC, S_SC, 8*N*2), 'ze': (R_ZE, S_ZE, 8*N*2), 'ac': (R_AC, S_AC, K*2), 'dbg': (R_DBG, S_DBG, 256)}
    for n in names:
        srd(a, *table[n])

PQ, PO, PSC, PZS, PAV, PT = 112, 144, 160, 164, 168, 176
PV_Q, PV_S, PV_A, PV_G, PV_L = 184, 185, 186, 187, 188
T6, T7, T8, T9 = 189, 190, 191, 192

def p_addresses(a):
    a.i(f"v_mul_u32_u24 v{T6}, 2341, v0")
    a.i(f"v_lshrrev_b32 v{T6}, 16, v{T6}")
    a.i(f"v_mul_u32_u24 v{T7}, 28, v{T6}")
    a.i(f"v_sub_u32 v{T7}, v0, v{T7}")
    a.i(f"v_mul_u32_u24 v{PV_Q}, 0x1c000, v{T6}")
    a.i(f"v_lshl_add_u32 v{PV_Q}, v{T7}, 4, v{PV_Q}")

def p_addresses2(a):
    a.i(f"v_lshlrev_b32 v{PV_S}, 3, v{T7}")
    a.i(f"v_lshlrev_b32 v{PV_A}, 4, v{T6}")

def p_addresses3(a):
    a.i(f"v_lshrrev_b32 v{T8}, 3, v{T7}")
    a.i(f"v_and_b32 v{T9}, 1, v{T7}")
    a.i(f"v_lshl_add_u32 v{T8}, v{T8}, 1, v{T9}")
    a.i(f"v_bfe_u32 v{T9}, v{T7}, 1, 2")
    a.i(f"v_cmp_le_u32 vcc, 24, v{T7}")
    a.i(f"v_lshl_add_u32 v{T8}, v{T8}, 2, v{T9}")
    a.i(f"v_mul_u32_u24 v{PV_G}, 1792, v{T6}")
    a.i(f"v_cndmask_b32 v{T8}, v{T8}, v{T7}, vcc")
    a.i(f"v_cmp_le_u32 vcc, 8, v{T6}")
    a.i(f"v_lshl_add_u32 v{PV_G}, v{T8}, 4, v{PV_G}")
    a.i(f"v_add_u32 v{PV_L}, 32768, v{PV_G}")
    a.i(f"v_add_u32 v{T9}, {STAGE - BLK}, v{PV_L}")
    a.i(f"v_cndmask_b32 v{PV_L}, v{PV_L}, v{T9}, vcc")

def p_loads(a):
    a.i(f"s_mul_i32 s56, s{S_MI}, {128*14336}")
    a.i(f"s_mul_i32 s57, s{S_NJ}, 448")
    a.i("s_add_u32 s56, s56, s57")
    for e in range(8):
        a.i(f"buffer_load_dwordx4 v[{PQ+4*e}:{PQ+4*e+3}], v{PV_Q}, s[{R_QW}:{R_QW+3}], s56 offen")
        if e < 7:
            a.i("s_add_u32 s56, s56, 14336")
    p_addresses2(a)
    emit_srds(a, ['sc', 'ze', 'ac'])
    a.i(f"s_mul_i32 s57, s{S_MI}, 7168")
    a.i(f"s_mul_i32 s58, s{S_NJ}, 224")
    a.i("s_add_u32 s57, s57, s58")
    a.i(f"s_lshl_b32 s58, s{S_MI}, 8")
    a.i(f"buffer_load_dwordx2 v[{PT}:{PT+1}], v{PV_S}, s[{R_SC}:{R_SC+3}], s57 offen")
    a.i(f"buffer_load_dwordx2 v[{PT+2}:{PT+3}], v{PV_S}, s[{R_ZE}:{R_ZE+3}], s57 offen")
    a.i(f"buffer_load_dwordx4 v[{PT+4}:{PT+7}], v{PV_A}, s[{R_AC}:{R_AC+3}], s58 offen")

def p_convert(a, sfl):
    Q, SC, ZS, AV, T, O = PQ, PSC, PZS, PAV, PT, PO
    a.i(f"s_mul_i32 s59, s{S_NJ}, {SLAB}")
    a.i(f"s_mul_i32 s60, s{S_MI}, {2*BLK}")
    a.i("s_add_u32 s59, s59, s60")
    for c in range(2):
        a.i(f"v_lshlrev_b32 v{SC+2*c}, 16, v{T+c}")
        a.i(f"v_and_b32 v{SC+2*c+1}, 0xffff0000, v{T+c}")
        a.i(f"v_lshlrev_b32 v{ZS+2*c}, 16, v{T+2+c}")
        a.i(f"v_and_b32 v{ZS+2*c+1}, 0xffff0000, v{T+2+c}")
    for c in range(4):
        a.i(f"v_mul_f32 v{ZS+c}, v{ZS+c}, v{SC+c}")
    for d in range(4):
        a.i(f"v_lshlrev_b32 v{AV+2*d}, 16, v{T+4+d}")
        a.i(f"v_and_b32 v{AV+2*d+1}, 0xffff0000, v{T+4+d}")
    for e in range(8):
        for c in range(4):
            a.i(f"v_cvt_f32_i32 v{Q+4*e+c}, v{Q+4*e+c}")
        for c in range(0, 4, 2):
            r = Q + 4*e + c
            a.i(f"v_pk_fma_f32 v[{r}:{r+1}], v[{r}:{r+1}], v[{SC+c}:{SC+c+1}], v[{ZS+c}:{ZS+c+1}] neg_lo:[0,0,1] neg_hi:[0,0,1]")
        for c in range(0, 4, 2):
            r = Q + 4*e + c
            ap = AV + (e & ~1)
            sel = "op_sel:[0,0] op_sel_hi:[1,0]" if e % 2 == 0 else "op_sel:[0,1] op_sel_hi:[1,1]"
            a.i(f"v_pk_mul_f32 v[{r}:{r+1}], v[{r}:{r+1}], v[{ap}:{ap+1}] {sel}")
    for c in range(4):
        for e in range(0, 8, 2):
            a.i(f"v_cvt_pk_bf16_f32 v{O+4*c+e//2}, v{Q+4*e+c}, v{Q+4*(e+1)+c}")
        a.i(f"buffer_store_dwordx4 v[{O+4*c}:{O+4*c+3}], v{PV_G}, s[{R_W}:{R_W+3}], s59 offen offset:{448*c} {sfl}")
        a.i(f"ds_write_b128 v{PV_L}, v[{O+4*c}:{O+4*c+3}] offset:{448*c}")

def gen_kernel(a, name, stamps, opt):
    gfl = opt.get('gfl', '')
    sfl = opt.get('sfl', 'sc1')
    lfl = opt.get('lfl', 'sc1')
    touch = opt.get('touch', 1)
    ACC = 0
    XF = [112, 156]; WF = [128, 172]
    VX0, VX1, VW, BX0, BX1, BW = 200, 201, 202, 203, 204, 205
    VO4, VO2, VT = 206, 207, 208
    VA, VB = 8, 16
    kernel_begin(a, name)
    a.i("s_cmp_ge_u32 s2, 256")
    a.i("s_cbranch_scc1 L_end")
    stamp(a, stamps, 76)
    a.i("s_load_dwordx16 s[4:19], s[0:1], 0")
    a.i("v_lshrrev_b32 v1, 6, v0")
    a.i("v_and_b32 v2, 63, v0")
    a.i(f"v_readfirstlane_b32 s{S_W}, v1")
    a.i("s_and_b32 s23, s2, 7")
    a.i("s_lshr_b32 s56, s2, 6")
    a.i("s_lshl_b32 s23, s23, 2")
    a.i(f"s_add_u32 s{S_NJ}, s23, s56")
    a.i(f"s_bfe_u32 s{S_MI}, s2, 0x30003")
    p_addresses(a)
    a.i(f"s_cmp_eq_u32 s{S_W}, 7")
    a.i("s_cbranch_scc1 L_wave7")
    a.i("s_waitcnt lgkmcnt(0)")
    emit_srds(a, ['qw'])
    p_loads(a)
    emit_srds(a, ['x', 'w'])
    p_addresses3(a)
    a.i(f"s_cmp_ge_u32 s{S_W}, 4")
    a.i("s_cbranch_scc1 L_loader")
    emit_srds(a, ['out'])
    a.i("v_and_b32 v10, 15, v2")
    a.i("v_lshrrev_b32 v11, 4, v2")
    a.i("v_lshrrev_b32 v12, 1, v10")
    a.i("v_xor_b32 v12, v12, v11")
    a.i("v_lshlrev_b32 v12, 4, v12")
    a.i(f"v_lshl_add_u32 v{BX0}, v10, 7, v12")
    a.i(f"s_lshl_b32 s56, s{S_W}, 13")
    a.i(f"v_add_u32 v{BX0}, s56, v{BX0}")
    a.i(f"v_xor_b32 v{BX1}, 64, v{BX0}")
    a.i(f"v_mul_u32_u24 v{BW}, 1792, v11")
    a.i("v_and_b32 v12, 3, v10")
    a.i("v_mul_u32_u24 v12, 448, v12")
    a.i("v_lshrrev_b32 v13, 2, v10")
    a.i("v_lshl_add_u32 v12, v13, 4, v12")
    a.i(f"v_add_u32 v{BW}, v{BW}, v12")
    a.i(f"v_add_u32 v{BW}, 32768, v{BW}")
    a.i(f"s_lshl_b32 s56, s{S_MI}, 8")
    a.i(f"s_lshl_b32 s57, s{S_W}, 6")
    a.i("s_add_u32 s56, s56, s57")
    a.i("v_add_u32 v13, s56, v10")
    a.i("v_mul_u32_u24 v13, 7168, v13")
    a.i(f"s_mul_i32 s57, s{S_NJ}, 224")
    a.i(f"v_lshl_add_u32 v{VO4}, v11, 4, v13")
    a.i(f"v_add_u32 v{VO4}, s57, v{VO4}")
    a.i(f"v_lshl_add_u32 v{VO2}, v11, 3, v13")
    a.i("s_add_u32 s57, s57, 192")
    a.i(f"v_add_u32 v{VO2}, s57, v{VO2}")
    a.i(f"v_mov_b32 v{VX0}, v{BX0}")
    a.i(f"v_mov_b32 v{VX1}, v{BX1}")
    a.i(f"v_mov_b32 v{VW}, v{BW}")
    a.i("v_lshlrev_b32 v209, 4, v0")
    for r in range(112):
        a.i(f"v_mov_b32 v{r}, 0")
    a.i("s_waitcnt vmcnt(0)")
    stamp(a, stamps, 90)
    p_convert(a, sfl)
    stamp(a, stamps, 92)
    ntouch = 0
    if touch:
        a.i("s_lshl_b32 s56, s2, 14")
        for j in range(4):
            a.i(f"buffer_load_dwordx4 v[212:215], v209, s[{R_X}:{R_X+3}], s56 offen")
            a.i("s_add_u32 s56, s56, 4096")
        ntouch = 4
    a.i(f"s_waitcnt vmcnt({ntouch}) lgkmcnt(0)")
    a.i("s_barrier")
    def reads(setn, h):
        out = []
        vx = VX1 if h else VX0
        order = [('x', 0), ('w', 0), ('x', 1), ('x', 2), ('x', 3)] + [('w', j) for j in range(1, 7)]
        for kind, idx in order:
            if kind == 'x':
                r = XF[setn] + 4*idx
                out.append(f"ds_read_b128 v[{r}:{r+3}], v{vx} offset:{idx*2048}")
            else:
                r = WF[setn] + 4*idx
                out.append(f"ds_read_b128 v[{r}:{r+3}], v{VW} offset:{h*7168 + idx*64}")
        return out
    def mfmas(setn):
        out = []
        for j in range(7):
            for i in (range(4) if j % 2 == 0 else range(3, -1, -1)):
                c = ACC + (j*4 + i) * 4
                w = WF[setn] + 4*j
                x = XF[setn] + 4*i
                out.append(f"v_mfma_f32_16x16x32_bf16 v[{c}:{c+3}], v[{w}:{w+3}], v[{x}:{x+3}], v[{c}:{c+3}]")
        return out
    stamp(a, stamps, 78)
    if stamps:
        a.i("s_memtime s[84:85]")
    for r in reads(0, 0):
        a.i(r)
    a.i("s_mov_b32 s67, 0")
    a.i("s_mov_b32 s66, 0")
    a.i("s_waitcnt lgkmcnt(0)")
    a.label("L_loop")
    mm = mfmas(0); rr = reads(1, 1)
    for k, m_ in enumerate(mm):
        a.i(m_)
        if k % 2 == 0 and k // 2 < len(rr):
            a.i(rr[k // 2])
        if k == 23:
            a.i(f"s_add_u32 s68, s66, {STAGE}")
            a.i(f"s_cmp_eq_u32 s68, {NSLOT*STAGE}")
            a.i("s_cselect_b32 s66, 0, s68")
        if k == 25:
            a.i(f"v_add_u32 v{VX0}, s66, v{BX0}")
        if k == 26:
            a.i(f"v_add_u32 v{VX1}, s66, v{BX1}")
            a.i(f"v_add_u32 v{VW}, s66, v{BW}")
    a.i("s_cmp_eq_u32 s67, 15")
    a.i("s_cbranch_scc1 L_last")
    a.i("s_waitcnt lgkmcnt(0)")
    a.i("s_barrier")
    if stamps:
        lab = a.newlabel("L_st")
        a.i("s_cmp_eq_u32 s67, 1")
        a.i(f"s_cbranch_scc0 {lab}")
        a.i("s_memrealtime s[94:95]")
        a.label(lab)
    mm = mfmas(1); rr = reads(0, 0)
    for k, m_ in enumerate(mm):
        a.i(m_)
        if k % 2 == 0 and k // 2 < len(rr):
            a.i(rr[k // 2])
    a.i("s_add_u32 s67, s67, 1")
    a.i("s_waitcnt lgkmcnt(0)")
    a.i("s_branch L_loop")
    a.label("L_last")
    a.i("s_waitcnt lgkmcnt(0)")
    for m_ in mfmas(1):
        a.i(m_)
    stamp(a, stamps, 80)
    if stamps:
        a.i("s_memtime s[86:87]")
    a.i("s_nop 7")
    a.i("s_nop 1")
    T0 = 112
    for i in range(4):
        a.i(f"s_mov_b32 s56, {i*16*7168}")
        for p in range(3):
            t = T0 + (i*3 + p) * 4
            c0 = ACC + ((2*p)*4 + i) * 4
            c1 = ACC + ((2*p+1)*4 + i) * 4
            a.i(f"v_cvt_pk_bf16_f32 v{t}, v{c0}, v{c0+1}")
            a.i(f"v_cvt_pk_bf16_f32 v{t+1}, v{c0+2}, v{c0+3}")
            a.i(f"v_cvt_pk_bf16_f32 v{t+2}, v{c1}, v{c1+1}")
            a.i(f"v_cvt_pk_bf16_f32 v{t+3}, v{c1+2}, v{c1+3}")
            a.i(f"buffer_store_dwordx4 v[{t}:{t+3}], v{VO4}, s[{R_OUT}:{R_OUT+3}], s56 offen offset:{64*p} {gfl}")
        t = T0 + 48 + i*2
        c0 = ACC + (6*4 + i) * 4
        a.i(f"v_cvt_pk_bf16_f32 v{t}, v{c0}, v{c0+1}")
        a.i(f"v_cvt_pk_bf16_f32 v{t+1}, v{c0+2}, v{c0+3}")
        a.i(f"buffer_store_dwordx2 v[{t}:{t+1}], v{VO2}, s[{R_OUT}:{R_OUT+3}], s56 offen {gfl}")
    if stamps:
        a.i("s_waitcnt vmcnt(0)")
        stamp(a, stamps, 82)
        a.i(f"s_cmp_eq_u32 s{S_W}, 0")
        a.i("s_cbranch_scc0 L_end")
        a.i(f"v_and_b32 v{VT}, 0xffff, v{BX0}")
        a.i(f"v_cmp_eq_u32 vcc, 0, v{VT}")
        a.i("s_and_saveexec_b64 s[74:75], vcc")
        a.i("s_cbranch_execz L_end")
        a.i("s_waitcnt lgkmcnt(0)")
        a.i("s_sub_u32 s86, s86, s84")
        a.i("s_mov_b32 s87, 0")
        stamp_store(a, [76, 78, 80, 82, 90, 86, 92, 94], 1, 200, 96)
    a.label("L_end")
    a.i("s_endpgm")

    def loader_setup():
        a.i("v_lshrrev_b32 v3, 3, v2")
        a.i(f"s_lshl_b32 s56, s{S_MI}, 8")
        a.i("s_lshl_b32 s57, s73, 6")
        a.i("s_add_u32 s56, s56, s57")
        a.i("v_add_u32 v3, s56, v3")
        a.i("v_lshlrev_b32 v3, 11, v3")
        a.i("v_and_b32 v4, 7, v2")
        a.i("v_lshrrev_b32 v5, 4, v2")
        a.i("v_xor_b32 v4, v4, v5")
        a.i("v_xor_b32 v5, 4, v4")
        a.i("v_lshl_add_u32 v4, v4, 4, v3")
        a.i("v_lshl_add_u32 v5, v5, 4, v3")
        for j in range(8):
            a.i(f"v_add_u32 v{VA+j}, {j*8*2048 - (j & 3)*1024}, v{4 + (j & 1)}")
        a.i("s_lshl_b32 s61, s73, 13")
        a.i("s_add_u32 s62, s61, 4096")
        a.i("s_lshl_b32 s57, s73, 12")
        a.i("s_cmp_eq_u32 s73, 3")
        a.i("s_cselect_b32 s57, 11264, s57")
        a.i("s_add_u32 s63, s57, 32768")
        a.i(f"v_lshlrev_b32 v{VB}, 4, v2")
        a.i(f"v_add_u32 v{VB}, s57, v{VB}")
        a.i(f"s_mul_i32 s72, s{S_NJ}, {SLAB}")
        a.i(f"v_mov_b32 v17, {FLAG_LDS}")
    def issueA(slot):
        a.i("s_lshl_b32 s64, s70, 7")
        for grp in range(2):
            a.i(f"s_add_u32 m0, {slot}, s{61+grp}")
            a.i("s_nop 0")
            for j in range(4):
                a.i(f"buffer_load_dwordx4 v{VA+4*grp+j}, s[{R_X}:{R_X+3}], s64 offen offset:{j*1024} lds")
        a.i("s_add_u32 s70, s70, 1")
        a.i("s_and_b32 s70, s70, 15")
    def issueB(slot, nB):
        a.i(f"s_mul_i32 s65, s71, {BLK}")
        a.i("s_add_u32 s65, s65, s72")
        a.i(f"s_add_u32 m0, {slot}, s63")
        a.i("s_add_u32 s71, s71, 1")
        a.i("s_and_b32 s71, s71, 15")
        for j in range(nB):
            a.i(f"buffer_load_dwordx4 v{VB}, s[{R_W}:{R_W+3}], s65 offen offset:{j*1024} {lfl} lds")

    a.label("L_wave7")
    a.i("s_mov_b32 s73, 3")
    loader_setup()
    a.i("s_waitcnt lgkmcnt(0)")
    emit_srds(a, ['x', 'w', 'dbg'])
    for j in range(8):
        a.i(f"v_subrev_u32 v{24+j}, {3*64*2048}, v{VA+j}")
    a.i("v_mov_b32 v20, 0")
    a.i("s_cmp_ge_u32 s2, 8")
    a.i("s_cbranch_scc1 L_notag")
    a.i("s_memrealtime s[58:59]")
    a.i("s_waitcnt lgkmcnt(0)")
    a.i("s_or_b32 s58, s58, 1")
    a.i("v_mov_b32 v22, s58")
    a.i("v_mov_b32 v23, 0")
    a.i("s_mov_b64 exec, 1")
    a.i(f"buffer_atomic_cmpswap v[22:23], v20, s[{R_DBG}:{R_DBG+3}], 0 offen")
    a.i("s_mov_b64 exec, -1")
    a.label("L_notag")
    for st in range(3):
        if st == 2:
            a.i("s_waitcnt vmcnt(32)")
        a.i(f"s_lshl_b32 s64, s{S_MI}, 1")
        a.i(f"s_add_u32 s64, s64, {st}")
        a.i("s_and_b32 s64, s64, 15")
        a.i("s_lshl_b32 s64, s64, 7")
        for rb in range(4):
            for grp in range(2):
                a.i(f"s_mov_b32 m0, {st*STAGE + rb*8192 + grp*4096}")
                if grp == 0 and rb > 0:
                    a.i(f"s_add_u32 s64, s64, {64*2048}")
                else:
                    a.i("s_nop 0")
                for j in range(4):
                    a.i(f"buffer_load_dwordx4 v{24+4*grp+j}, s[{R_X}:{R_X+3}], s64 offen offset:{j*1024} lds")
    a.i("s_mov_b32 s69, 0x40000")
    a.label("L_tagpoll")
    a.i(f"buffer_load_dword v23, v20, s[{R_DBG}:{R_DBG+3}], 0 offen sc1")
    a.i("s_waitcnt vmcnt(0)")
    a.i("v_readfirstlane_b32 s58, v23")
    a.i("s_sub_u32 s69, s69, 1")
    a.i("s_cmp_eq_u32 s69, 0")
    a.i("s_cbranch_scc1 L_tagdone")
    a.i("s_cmp_eq_u32 s58, 0")
    a.i("s_cbranch_scc1 L_tagpoll")
    a.label("L_tagdone")
    a.i("v_mov_b32 v22, 0")
    a.i("ds_write_b64 v17, v[22:23]")
    a.i("s_branch L_ld_join")

    a.label("L_loader")
    a.i(f"s_sub_u32 s73, s{S_W}, 4")
    loader_setup()
    emit_srds(a, ['dbg'])
    a.i("s_waitcnt vmcnt(0)")
    stamp(a, stamps, 88)
    p_convert(a, sfl)
    a.label("L_ld_join")
    stamp(a, stamps, 78)
    a.i("s_waitcnt vmcnt(0) lgkmcnt(0)")
    stamp(a, stamps, 80)
    a.i("s_barrier")
    stamp(a, stamps, 82)
    a.i(f"s_lshl_b32 s70, s{S_MI}, 1")
    a.i("s_add_u32 s71, s70, 2")
    a.i("s_and_b32 s71, s71, 15")
    a.i("s_add_u32 s70, s70, 3")
    a.i("s_and_b32 s70, s70, 15")
    a.i("ds_read_b32 v21, v17 offset:4")
    a.i(f"s_lshl_b32 s56, s{S_NJ}, 10")
    a.i(f"s_lshl_b32 s57, s{S_MI}, 7")
    a.i("s_add_u32 s57, s57, s56")
    a.i(f"s_add_u32 s57, s57, {WS_FLAGS}")
    a.i("v_mov_b32 v18, s57")
    a.i("v_and_b32 v19, 7, v2")
    a.i("v_lshlrev_b32 v19, 7, v19")
    a.i(f"s_add_u32 s56, s56, {WS_FLAGS}")
    a.i("v_add_u32 v19, s56, v19")
    a.i("s_waitcnt lgkmcnt(0)")
    a.i("s_cmp_lg_u32 s73, 0")
    a.i("s_cbranch_scc1 L_nopub")
    a.i("s_mov_b64 exec, 1")
    a.i(f"buffer_store_dword v21, v18, s[{R_W}:{R_W+3}], 0 offen sc1")
    a.i("s_mov_b64 exec, -1")
    a.label("L_nopub")
    a.i("s_barrier")
    a.i("s_mov_b32 s69, 0x100000")
    a.i("s_cmp_lg_u32 s73, 0")
    a.i("s_cbranch_scc1 L_lpoll")
    a.label("L_gpoll")
    a.i(f"buffer_load_dword v22, v19, s[{R_W}:{R_W+3}], 0 offen sc1")
    a.i("s_waitcnt vmcnt(0)")
    a.i("v_cmp_eq_u32 vcc, v21, v22")
    a.i("s_sub_u32 s69, s69, 1")
    a.i("s_cmp_eq_u32 s69, 0")
    a.i("s_cbranch_scc1 L_gdone")
    a.i("s_cmp_eq_u64 vcc, -1")
    a.i("s_cbranch_scc0 L_gpoll")
    a.label("L_gdone")
    a.i("v_mov_b32 v22, 1")
    a.i("ds_write_b32 v17, v22")
    a.i("s_branch L_polled")
    a.label("L_lpoll")
    a.i("ds_read_b32 v22, v17")
    a.i("s_waitcnt lgkmcnt(0)")
    a.i("v_readfirstlane_b32 s56, v22")
    a.i("s_sub_u32 s69, s69, 1")
    a.i("s_cmp_eq_u32 s69, 0")
    a.i("s_cbranch_scc1 L_polled")
    a.i("s_cmp_eq_u32 s56, 0")
    a.i("s_cbranch_scc1 L_lpoll")
    a.label("L_polled")
    stamp(a, stamps, 84)
    a.i("s_cmp_ge_u32 s73, 2")
    a.i("s_cbranch_scc1 L_loader3")
    for tag, nB in (("a", 4), ("b", 3)):
        if tag == "b":
            a.label("L_loader3")
        n = 8 + nB
        a.i(f"s_mov_b32 s66, {2*STAGE}")
        issueB("s66", nB)
        a.i("s_mov_b32 s66, 0")
        issueA("s66"); issueB("s66", nB)
        a.i(f"s_mov_b32 s66, {STAGE}")
        a.i("s_mov_b32 s67, 1")
        if stamps and tag == "a":
            a.i("s_cmp_lg_u32 s73, 1")
            a.i("s_cbranch_scc1 L_nost")
            a.i(f"s_waitcnt vmcnt({n})")
            stamp(a, stamps, 86)
            a.label("L_nost")
        a.label(f"L_ld_{tag}")
        a.i(f"s_waitcnt vmcnt({n})")
        a.i("s_barrier")
        issueA("s66"); issueB("s66", nB)
        a.i(f"s_add_u32 s66, s66, {STAGE}")
        a.i(f"s_cmp_eq_u32 s66, {NSLOT*STAGE}")
        a.i("s_cselect_b32 s66, 0, s66")
        a.i("s_add_u32 s67, s67, 1")
        a.i("s_cmp_lt_u32 s67, 13")
        a.i(f"s_cbranch_scc1 L_ld_{tag}")
        a.i(f"s_waitcnt vmcnt({n})")
        a.i("s_barrier")
        a.i("s_waitcnt vmcnt(0)")
        a.i("s_barrier")
        if stamps and tag == "a":
            a.i("s_cmp_lg_u32 s73, 1")
            a.i("s_cbranch_scc1 L_nost2")
            a.i("s_mov_b64 exec, 1")
            stamp_store(a, [76, 78, 80, 82, 84, 86, 88], 2, 120, 96)
            a.label("L_nost2")
        a.i("s_endpgm")

def gen(path, stamps=False, opt=None, rep=None):
    opt = opt or {}
    a = Asm()
    if rep:
        a(HEADER + f"; @launch kernel={MAIN} grid=(256,1,1) block=(512,1,1) lds={LDS}\n; @launch kernel=report_kernel grid=(1,1,1) block=(64,1,1) lds=0")
    else:
        a(HEADER + f"; @launch grid=(256,1,1) block=(512,1,1) lds={LDS}")
    a('.amdgcn_target "amdgcn-amd-amdhsa--gfx950"')
    a(".text")
    gen_kernel(a, MAIN, stamps, opt)
    if rep:
        gen_report(a, "report_kernel", *rep)
    descriptor(a, MAIN, 216, 102)
    if rep:
        descriptor(a, "report_kernel", 16, 32)
    open(path, "w").write(a.text())

if __name__ == "__main__":
    gen("v5.s")
    gen("v5s.s", stamps=True)
```

```python
import sys, struct
from asmlib import *

M, K, N = 2048, 1024, 3584
BLK = 8 * 112 * 16
SLAB = 16 * BLK
STAGE = 32768 + BLK
NSLOT = 3
FLAG_LDS = NSLOT * STAGE
LDS = FLAG_LDS + 64
WS_FLAGS = 8 << 20
STAMP_BASE = 128 << 20
S_X, S_QW, S_SC, S_ZE, S_AC, S_OUT, S_DBG, S_WS = 4, 6, 8, 10, 12, 14, 16, 18
S_MI, S_NJ, S_W = 20, 21, 22
R_X, R_W, R_OUT, R_QW, R_SC, R_ZE, R_AC, R_DBG = 24, 28, 32, 36, 40, 44, 48, 52

def stamp(a, on, reg):
    if on:
        a.i(f"s_memrealtime s[{reg}:{reg+1}]")

def stamp_store(a, sregs, slot, vt, tmp):
    a.i("s_waitcnt lgkmcnt(0)")
    a.i(f"s_add_u32 s{tmp}, s{S_WS}, {STAMP_BASE + slot * 65536}")
    a.i(f"s_addc_u32 s{tmp+1}, s{S_WS+1}, 0")
    a.i(f"s_and_b32 s{tmp+1}, s{tmp+1}, 0xffff")
    a.i(f"s_mov_b32 s{tmp+2}, 65536")
    a.i(f"s_mov_b32 s{tmp+3}, 0x00020000")
    a.i(f"s_lshl_b32 s{tmp+4}, s2, 6")
    a.i(f"v_mov_b32 v{vt}, s{tmp+4}")
    for n, r in enumerate(sregs):
        a.i(f"v_mov_b32 v{vt+2}, s{r}")
        a.i(f"v_mov_b32 v{vt+3}, s{r+1}")
        a.i(f"buffer_store_dwordx2 v[{vt+2}:{vt+3}], v{vt}, s[{tmp}:{tmp+3}], 0 offen offset:{8*n}")
        a.i("s_nop 1")

def emit_srds(a, names):
    table = {'x': (R_X, S_X, M*K*2), 'w': (R_W, S_WS, WS_FLAGS + 32768), 'out': (R_OUT, S_OUT, M*N*2), 'qw': (R_QW, S_QW, K*N*4),
             'sc': (R_SC, S_SC, 8*N*2), 'ze': (R_ZE, S_ZE, 8*N*2), 'ac': (R_AC, S_AC, K*2), 'dbg': (R_DBG, S_DBG, 256)}
    for n in names:
        srd(a, *table[n])

PQ, PO, PSC, PZS, PAV, PT = 112, 144, 160, 164, 168, 176
PV_Q, PV_S, PV_A, PV_G, PV_L = 184, 185, 186, 187, 188
T6, T7, T8, T9 = 189, 190, 191, 192

def p_addresses(a):
    a.i("v_cmp_le_u32 vcc, 28, v2")
    a.i(f"s_and_b32 s56, s{S_W}, 3")
    a.i("s_lshl_b32 s56, s56, 1")
    a.i(f"v_cndmask_b32 v{T8}, 0, 1, vcc")
    a.i(f"v_add_u32 v{T6}, s56, v{T8}")
    a.i(f"v_mul_u32_u24 v{T8}, 28, v{T8}")
    a.i(f"v_sub_u32 v{T7}, v2, v{T8}")
    a.i("v_cmp_le_u32 vcc, 56, v2")
    a.i(f"v_mul_u32_u24 v{PV_Q}, 0x1c000, v{T6}")
    a.i(f"v_lshl_add_u32 v{PV_Q}, v{T7}, 4, v{PV_Q}")
    a.i(f"v_mov_b32 v{T8}, 0x7f000000")
    a.i(f"v_cndmask_b32 v{PV_Q}, v{PV_Q}, v{T8}, vcc")

def p_addresses2(a):
    a.i(f"v_lshlrev_b32 v{PV_S}, 3, v{T7}")
    a.i(f"v_lshlrev_b32 v{PV_A}, 4, v{T6}")

def p_addresses3(a):
    a.i(f"v_lshrrev_b32 v{T8}, 3, v{T7}")
    a.i(f"v_and_b32 v{T9}, 1, v{T7}")
    a.i(f"v_lshl_add_u32 v{T8}, v{T8}, 1, v{T9}")
    a.i(f"v_bfe_u32 v{T9}, v{T7}, 1, 2")
    a.i(f"v_cmp_le_u32 vcc, 24, v{T7}")
    a.i(f"v_lshl_add_u32 v{T8}, v{T8}, 2, v{T9}")
    a.i(f"v_mul_u32_u24 v{PV_G}, 1792, v{T6}")
    a.i(f"v_cndmask_b32 v{T8}, v{T8}, v{T7}, vcc")
    a.i(f"v_lshl_add_u32 v{PV_G}, v{T8}, 4, v{PV_G}")
    a.i(f"v_add_u32 v{PV_L}, 32768, v{PV_G}")

def p_loads(a):
    a.i(f"s_mul_i32 s56, s23, {64*14336}")
    a.i(f"s_mul_i32 s57, s{S_NJ}, 448")
    a.i("s_add_u32 s56, s56, s57")
    for e in range(8):
        a.i(f"buffer_load_dwordx4 v[{PQ+4*e}:{PQ+4*e+3}], v{PV_Q}, s[{R_QW}:{R_QW+3}], s56 offen")
        if e < 7:
            a.i("s_add_u32 s56, s56, 14336")
    p_addresses2(a)
    emit_srds(a, ['sc', 'ze', 'ac', 'dbg'])
    a.i(f"s_mul_i32 s57, s{S_MI}, 7168")
    a.i(f"s_mul_i32 s58, s{S_NJ}, 224")
    a.i("s_add_u32 s57, s57, s58")
    a.i("s_lshl_b32 s58, s23, 7")
    a.i(f"buffer_load_dwordx2 v[{PT}:{PT+1}], v{PV_S}, s[{R_SC}:{R_SC+3}], s57 offen")
    a.i(f"buffer_load_dwordx2 v[{PT+2}:{PT+3}], v{PV_S}, s[{R_ZE}:{R_ZE+3}], s57 offen")
    a.i(f"buffer_load_dwordx4 v[{PT+4}:{PT+7}], v{PV_A}, s[{R_AC}:{R_AC+3}], s58 offen")

def p_convert(a, sfl, to_lds):
    Q, SC, ZS, AV, T, O = PQ, PSC, PZS, PAV, PT, PO
    a.i(f"s_mul_i32 s59, s{S_NJ}, {SLAB}")
    a.i(f"s_mul_i32 s60, s23, {BLK}")
    a.i("s_add_u32 s59, s59, s60")
    for c in range(2):
        a.i(f"v_lshlrev_b32 v{SC+2*c}, 16, v{T+c}")
        a.i(f"v_and_b32 v{SC+2*c+1}, 0xffff0000, v{T+c}")
        a.i(f"v_lshlrev_b32 v{ZS+2*c}, 16, v{T+2+c}")
        a.i(f"v_and_b32 v{ZS+2*c+1}, 0xffff0000, v{T+2+c}")
    for c in range(4):
        a.i(f"v_mul_f32 v{ZS+c}, v{ZS+c}, v{SC+c}")
    for d in range(4):
        a.i(f"v_lshlrev_b32 v{AV+2*d}, 16, v{T+4+d}")
        a.i(f"v_and_b32 v{AV+2*d+1}, 0xffff0000, v{T+4+d}")
    for e in range(8):
        for c in range(4):
            a.i(f"v_cvt_f32_i32 v{Q+4*e+c}, v{Q+4*e+c}")
        for c in range(0, 4, 2):
            r = Q + 4*e + c
            a.i(f"v_pk_fma_f32 v[{r}:{r+1}], v[{r}:{r+1}], v[{SC+c}:{SC+c+1}], v[{ZS+c}:{ZS+c+1}] neg_lo:[0,0,1] neg_hi:[0,0,1]")
        for c in range(0, 4, 2):
            r = Q + 4*e + c
            ap = AV + (e & ~1)
            sel = "op_sel:[0,0] op_sel_hi:[1,0]" if e % 2 == 0 else "op_sel:[0,1] op_sel_hi:[1,1]"
            a.i(f"v_pk_mul_f32 v[{r}:{r+1}], v[{r}:{r+1}], v[{ap}:{ap+1}] {sel}")
    for c in range(4):
        for e in range(0, 8, 2):
            a.i(f"v_cvt_pk_bf16_f32 v{O+4*c+e//2}, v{Q+4*e+c}, v{Q+4*(e+1)+c}")
    a.i("s_mov_b32 exec_hi, 0x00ffffff")
    for c in range(4):
        if to_lds:
            a.i(f"ds_write_b128 v{PV_L}, v[{O+4*c}:{O+4*c+3}] offset:{448*c}")
        a.i(f"buffer_store_dwordx4 v[{O+4*c}:{O+4*c+3}], v{PV_G}, s[{R_W}:{R_W+3}], s59 offen offset:{448*c} {sfl}")
    a.i("s_mov_b32 exec_hi, -1")

def gen_kernel(a, name, stamps, opt):
    gfl = opt.get('gfl', '')
    sfl = opt.get('sfl', 'sc1')
    lfl = opt.get('lfl', 'sc1')
    touch = opt.get('touch', 1)
    ACC = 0
    XF = [112, 156]; WF = [128, 172]
    VX0, VX1, VW, BX0, BX1, BW = 200, 201, 202, 203, 204, 205
    VO4, VO2, VT = 206, 207, 208
    VA, VB = 8, 16
    kernel_begin(a, name)
    a.i("s_cmp_ge_u32 s2, 256")
    a.i("s_cbranch_scc1 L_end")
    stamp(a, stamps, 76)
    a.i("s_load_dwordx16 s[4:19], s[0:1], 0")
    a.i("v_lshrrev_b32 v1, 6, v0")
    a.i("v_and_b32 v2, 63, v0")
    a.i(f"v_readfirstlane_b32 s{S_W}, v1")
    a.i("s_and_b32 s23, s2, 7")
    a.i("s_lshr_b32 s56, s2, 6")
    a.i("s_lshl_b32 s23, s23, 2")
    a.i(f"s_add_u32 s{S_NJ}, s23, s56")
    a.i(f"s_bfe_u32 s{S_MI}, s2, 0x30003")
    a.i(f"s_lshr_b32 s56, s{S_W}, 2")
    a.i(f"s_lshl_b32 s23, s{S_MI}, 1")
    a.i("s_add_u32 s23, s23, s56")
    p_addresses(a)
    a.i(f"s_cmp_ge_u32 s{S_W}, 4")
    a.i("s_cbranch_scc1 L_loader")
    a.i("s_waitcnt lgkmcnt(0)")
    emit_srds(a, ['qw', 'dbg'])
    a.i("v_mov_b32 v193, 0")
    a.i(f"s_lshl_b32 s56, s{S_W}, 3")
    a.i("s_or_b32 s56, s56, s2")
    a.i("s_cmp_ge_u32 s56, 8")
    a.i("s_cbranch_scc1 L_notag")
    a.i("s_memrealtime s[58:59]")
    a.i("s_waitcnt lgkmcnt(0)")
    a.i("s_or_b32 s58, s58, 1")
    a.i("v_mov_b32 v194, s58")
    a.i("v_mov_b32 v195, 0")
    a.i("s_mov_b64 exec, 1")
    a.i(f"buffer_atomic_cmpswap v[194:195], v193, s[{R_DBG}:{R_DBG+3}], 0 offen")
    a.i("s_mov_b64 exec, -1")
    a.label("L_notag")
    p_loads(a)
    emit_srds(a, ['x', 'w', 'out'])
    p_addresses3(a)
    a.i("v_and_b32 v10, 15, v2")
    a.i("v_lshrrev_b32 v11, 4, v2")
    a.i("v_lshrrev_b32 v12, 1, v10")
    a.i("v_xor_b32 v12, v12, v11")
    a.i("v_lshlrev_b32 v12, 4, v12")
    a.i(f"v_lshl_add_u32 v{BX0}, v10, 7, v12")
    a.i(f"s_lshl_b32 s56, s{S_W}, 13")
    a.i(f"v_add_u32 v{BX0}, s56, v{BX0}")
    a.i(f"v_xor_b32 v{BX1}, 64, v{BX0}")
    a.i(f"v_mul_u32_u24 v{BW}, 1792, v11")
    a.i("v_and_b32 v12, 3, v10")
    a.i("v_mul_u32_u24 v12, 448, v12")
    a.i("v_lshrrev_b32 v13, 2, v10")
    a.i("v_lshl_add_u32 v12, v13, 4, v12")
    a.i(f"v_add_u32 v{BW}, v{BW}, v12")
    a.i(f"v_add_u32 v{BW}, 32768, v{BW}")
    a.i(f"s_lshl_b32 s56, s{S_MI}, 8")
    a.i(f"s_lshl_b32 s57, s{S_W}, 6")
    a.i("s_add_u32 s56, s56, s57")
    a.i("v_add_u32 v13, s56, v10")
    a.i("v_mul_u32_u24 v13, 7168, v13")
    a.i(f"s_mul_i32 s57, s{S_NJ}, 224")
    a.i(f"v_lshl_add_u32 v{VO4}, v11, 4, v13")
    a.i(f"v_add_u32 v{VO4}, s57, v{VO4}")
    a.i(f"v_lshl_add_u32 v{VO2}, v11, 3, v13")
    a.i("s_add_u32 s57, s57, 192")
    a.i(f"v_add_u32 v{VO2}, s57, v{VO2}")
    a.i(f"v_mov_b32 v{VX0}, v{BX0}")
    a.i(f"v_mov_b32 v{VX1}, v{BX1}")
    a.i(f"v_mov_b32 v{VW}, v{BW}")
    a.i("v_lshlrev_b32 v209, 4, v0")
    for r in range(112):
        a.i(f"v_mov_b32 v{r}, 0")
    a.i("s_waitcnt vmcnt(0)")
    stamp(a, stamps, 90)
    a.i(f"buffer_load_dword v195, v193, s[{R_DBG}:{R_DBG+3}], 0 offen sc1")
    p_convert(a, sfl, True)
    stamp(a, stamps, 92)
    ntouch = 0
    if touch:
        a.i("s_lshl_b32 s56, s2, 14")
        for j in range(4):
            a.i(f"buffer_load_dwordx4 v[212:215], v209, s[{R_X}:{R_X+3}], s56 offen")
            a.i("s_add_u32 s56, s56, 4096")
        ntouch = 4
    a.i(f"s_cmp_lg_u32 s{S_W}, 0")
    a.i("s_cbranch_scc1 L_tagskip")
    a.i(f"s_waitcnt vmcnt({4 + ntouch})")
    a.i("s_mov_b32 s69, 0x40000")
    a.label("L_tagpoll")
    a.i("v_readfirstlane_b32 s58, v195")
    a.i("s_sub_u32 s69, s69, 1")
    a.i("s_cmp_eq_u32 s69, 0")
    a.i("s_cbranch_scc1 L_tagdone")
    a.i("s_cmp_lg_u32 s58, 0")
    a.i("s_cbranch_scc1 L_tagdone")
    a.i(f"buffer_load_dword v195, v193, s[{R_DBG}:{R_DBG+3}], 0 offen sc1")
    a.i("s_waitcnt vmcnt(0)")
    a.i("s_branch L_tagpoll")
    a.label("L_tagdone")
    a.i(f"v_mov_b32 v194, {FLAG_LDS + 8}")
    a.i("ds_write_b32 v194, v195")
    a.label("L_tagskip")
    a.i(f"s_waitcnt vmcnt({ntouch}) lgkmcnt(0)")
    a.i("s_barrier")
    def reads(setn, h):
        out = []
        vx = VX1 if h else VX0
        order = [('x', 0), ('w', 0), ('x', 1), ('x', 2), ('x', 3)] + [('w', j) for j in range(1, 7)]
        for kind, idx in order:
            if kind == 'x':
                r = XF[setn] + 4*idx
                out.append(f"ds_read_b128 v[{r}:{r+3}], v{vx} offset:{idx*2048}")
            else:
                r = WF[setn] + 4*idx
                out.append(f"ds_read_b128 v[{r}:{r+3}], v{VW} offset:{h*7168 + idx*64}")
        return out
    def mfmas(setn):
        out = []
        for j in range(7):
            for i in (range(4) if j % 2 == 0 else range(3, -1, -1)):
                c = ACC + (j*4 + i) * 4
                w = WF[setn] + 4*j
                x = XF[setn] + 4*i
                out.append(f"v_mfma_f32_16x16x32_bf16 v[{c}:{c+3}], v[{w}:{w+3}], v[{x}:{x+3}], v[{c}:{c+3}]")
        return out
    stamp(a, stamps, 78)
    if stamps:
        a.i("s_memtime s[84:85]")
    for r in reads(0, 0):
        a.i(r)
    a.i("s_mov_b32 s67, 0")
    a.i("s_mov_b32 s66, 0")
    a.i("s_waitcnt lgkmcnt(0)")
    a.label("L_loop")
    mm = mfmas(0); rr = reads(1, 1)
    for k, m_ in enumerate(mm):
        a.i(m_)
        if k % 2 == 0 and k // 2 < len(rr):
            a.i(rr[k // 2])
        if k == 23:
            a.i(f"s_add_u32 s68, s66, {STAGE}")
            a.i(f"s_cmp_eq_u32 s68, {NSLOT*STAGE}")
            a.i("s_cselect_b32 s66, 0, s68")
        if k == 25:
            a.i(f"v_add_u32 v{VX0}, s66, v{BX0}")
        if k == 26:
            a.i(f"v_add_u32 v{VX1}, s66, v{BX1}")
            a.i(f"v_add_u32 v{VW}, s66, v{BW}")
    a.i("s_cmp_eq_u32 s67, 15")
    a.i("s_cbranch_scc1 L_last")
    a.i("s_waitcnt lgkmcnt(0)")
    a.i("s_barrier")
    if stamps:
        lab = a.newlabel("L_st")
        a.i("s_cmp_eq_u32 s67, 0")
        a.i(f"s_cbranch_scc0 {lab}")
        a.i("s_memrealtime s[94:95]")
        a.label(lab)
        a.i("v_mov_b32 v211, s88")
        a.i("s_mov_b32 m0, s67")
        a.i("v_readfirstlane_b32 s87, v211")
        a.i("s_nop 3")
        a.i("v_writelane_b32 v210, s87, m0")
        a.i("s_memtime s[88:89]")
    mm = mfmas(1); rr = reads(0, 0)
    for k, m_ in enumerate(mm):
        a.i(m_)
        if k % 2 == 0 and k // 2 < len(rr):
            a.i(rr[k // 2])
    a.i("s_add_u32 s67, s67, 1")
    a.i("s_waitcnt lgkmcnt(0)")
    a.i("s_branch L_loop")
    a.label("L_last")
    a.i("s_waitcnt lgkmcnt(0)")
    for m_ in mfmas(1):
        a.i(m_)
    stamp(a, stamps, 80)
    if stamps:
        a.i("s_memtime s[86:87]")
    a.i("s_nop 7")
    a.i("s_nop 1")
    T0 = 112
    for i in range(4):
        a.i(f"s_mov_b32 s56, {i*16*7168}")
        for p in range(3):
            t = T0 + (i*3 + p) * 4
            c0 = ACC + ((2*p)*4 + i) * 4
            c1 = ACC + ((2*p+1)*4 + i) * 4
            a.i(f"v_cvt_pk_bf16_f32 v{t}, v{c0}, v{c0+1}")
            a.i(f"v_cvt_pk_bf16_f32 v{t+1}, v{c0+2}, v{c0+3}")
            a.i(f"v_cvt_pk_bf16_f32 v{t+2}, v{c1}, v{c1+1}")
            a.i(f"v_cvt_pk_bf16_f32 v{t+3}, v{c1+2}, v{c1+3}")
            a.i(f"buffer_store_dwordx4 v[{t}:{t+3}], v{VO4}, s[{R_OUT}:{R_OUT+3}], s56 offen offset:{64*p} {gfl}")
        t = T0 + 48 + i*2
        c0 = ACC + (6*4 + i) * 4
        a.i(f"v_cvt_pk_bf16_f32 v{t}, v{c0}, v{c0+1}")
        a.i(f"v_cvt_pk_bf16_f32 v{t+1}, v{c0+2}, v{c0+3}")
        a.i(f"buffer_store_dwordx2 v[{t}:{t+1}], v{VO2}, s[{R_OUT}:{R_OUT+3}], s56 offen {gfl}")
    if stamps:
        a.i("s_waitcnt vmcnt(0)")
        stamp(a, stamps, 82)
        a.i(f"s_cmp_eq_u32 s{S_W}, 0")
        a.i("s_cbranch_scc0 L_end")
        a.i(f"v_and_b32 v{VT}, 0xffff, v{BX0}")
        a.i(f"v_cmp_eq_u32 vcc, 0, v{VT}")
        a.i("s_and_saveexec_b64 s[74:75], vcc")
        a.i("s_cbranch_execz L_end")
        a.i("s_waitcnt lgkmcnt(0)")
        a.i("s_sub_u32 s86, s86, s84")
        a.i("s_mov_b32 s87, 0")
        stamp_store(a, [76, 78, 80, 82, 90, 86, 92, 94], 1, 200, 96)
        a.i("s_mov_b64 exec, 0xffff")
        a.i("v_mbcnt_lo_u32_b32 v200, -1, 0")
        a.i("v_lshlrev_b32 v200, 2, v200")
        a.i("s_lshl_b32 s100, s2, 6")
        a.i("v_add_u32 v200, s100, v200")
        a.i(f"s_add_u32 s96, s96, 131072")
        a.i("s_addc_u32 s97, s97, 0")
        a.i("buffer_store_dword v210, v200, s[96:99], 0 offen")
    a.label("L_end")
    a.i("s_endpgm")

    def stage_ks():
        a.i(f"s_add_u32 s56, s{S_MI}, s70")
        a.i("s_and_b32 s56, s56, 7")
        a.i("s_lshl_b32 s56, s56, 1")
        a.i("s_lshr_b32 s57, s70, 3")
        a.i("s_add_u32 s56, s56, s57")
        a.i("s_lshl_b32 s64, s56, 7")
        a.i(f"s_mul_i32 s65, s56, {BLK}")
        a.i("s_add_u32 s65, s65, s72")
        a.i("s_add_u32 s70, s70, 1")
    def issueA(slot):
        for grp in range(2):
            a.i(f"s_add_u32 m0, {slot}, s{61+grp}")
            a.i("s_nop 0")
            for j in range(4):
                a.i(f"buffer_load_dwordx4 v{VA+4*grp+j}, s[{R_X}:{R_X+3}], s64 offen offset:{j*1024} lds")
    def issueB(slot, nB):
        a.i(f"s_add_u32 m0, {slot}, s63")
        a.i("s_nop 0")
        for j in range(nB):
            a.i(f"buffer_load_dwordx4 v{VB}, s[{R_W}:{R_W+3}], s65 offen offset:{j*1024} {lfl} lds")
    def publish(word, uniq):
        a.i("s_cmp_lg_u32 s73, 0")
        a.i(f"s_cbranch_scc1 L_nopub{uniq}")
        a.i("s_mov_b64 exec, 1")
        a.i(f"buffer_store_dword v21, v18, s[{R_W}:{R_W+3}], 0 offen offset:{4*word} sc1")
        a.i("s_mov_b64 exec, -1")
        a.label(f"L_nopub{uniq}")
    def poll(word, uniq):
        a.i("s_mov_b32 s69, 0x100000")
        a.i("s_cmp_lg_u32 s73, 0")
        a.i(f"s_cbranch_scc1 L_lpoll{uniq}")
        a.label(f"L_gpoll{uniq}")
        a.i(f"buffer_load_dword v22, v19, s[{R_W}:{R_W+3}], 0 offen offset:{4*word} sc1")
        a.i("s_waitcnt vmcnt(0)")
        a.i("v_cmp_eq_u32 vcc, v21, v22")
        a.i("s_sub_u32 s69, s69, 1")
        a.i("s_cmp_eq_u32 s69, 0")
        a.i(f"s_cbranch_scc1 L_gdone{uniq}")
        a.i("s_cmp_eq_u64 vcc, -1")
        a.i(f"s_cbranch_scc0 L_gpoll{uniq}")
        a.label(f"L_gdone{uniq}")
        a.i("v_mov_b32 v22, 1")
        a.i(f"ds_write_b32 v17, v22 offset:{4*word}")
        a.i(f"s_branch L_polled{uniq}")
        a.label(f"L_lpoll{uniq}")
        a.i(f"ds_read_b32 v22, v17 offset:{4*word}")
        a.i("s_waitcnt lgkmcnt(0)")
        a.i("v_readfirstlane_b32 s56, v22")
        a.i("s_sub_u32 s69, s69, 1")
        a.i("s_cmp_eq_u32 s69, 0")
        a.i(f"s_cbranch_scc1 L_polled{uniq}")
        a.i("s_cmp_eq_u32 s56, 0")
        a.i(f"s_cbranch_scc1 L_lpoll{uniq}")
        a.label(f"L_polled{uniq}")

    a.label("L_loader")
    a.i(f"s_sub_u32 s73, s{S_W}, 4")
    a.i("v_lshrrev_b32 v3, 3, v2")
    a.i(f"s_lshl_b32 s56, s{S_MI}, 8")
    a.i("s_lshl_b32 s57, s73, 6")
    a.i("s_add_u32 s56, s56, s57")
    a.i("v_add_u32 v3, s56, v3")
    a.i("v_lshlrev_b32 v3, 11, v3")
    a.i("v_and_b32 v4, 7, v2")
    a.i("v_lshrrev_b32 v5, 4, v2")
    a.i("v_xor_b32 v4, v4, v5")
    a.i("v_xor_b32 v5, 4, v4")
    a.i("v_lshl_add_u32 v4, v4, 4, v3")
    a.i("v_lshl_add_u32 v5, v5, 4, v3")
    for j in range(8):
        a.i(f"v_add_u32 v{VA+j}, {j*8*2048 - (j & 3)*1024}, v{4 + (j & 1)}")
    a.i("s_lshl_b32 s61, s73, 13")
    a.i("s_add_u32 s62, s61, 4096")
    a.i(f"s_mul_i32 s72, s{S_NJ}, {SLAB}")
    a.i("s_mov_b32 s70, 0")
    a.i("s_waitcnt lgkmcnt(0)")
    emit_srds(a, ['x'])
    stage_ks()
    a.i("s_mov_b32 s66, 0")
    issueA("s66")
    emit_srds(a, ['w', 'qw'])
    p_addresses3(a)
    a.i("s_lshl_b32 s57, s73, 12")
    a.i("s_cmp_eq_u32 s73, 3")
    a.i("s_cselect_b32 s57, 11264, s57")
    a.i("s_add_u32 s63, s57, 32768")
    a.i(f"v_lshlrev_b32 v{VB}, 4, v2")
    a.i(f"v_add_u32 v{VB}, s57, v{VB}")
    a.i(f"s_lshl_b32 s56, s{S_NJ}, 10")
    a.i(f"s_add_u32 s56, s56, {WS_FLAGS}")
    a.i(f"s_lshl_b32 s57, s{S_MI}, 7")
    a.i("s_add_u32 s57, s57, s56")
    a.i("v_mov_b32 v18, s57")
    a.i("v_and_b32 v19, 7, v2")
    a.i("v_lshlrev_b32 v19, 7, v19")
    a.i("v_add_u32 v19, s56, v19")
    a.i(f"v_mov_b32 v17, {FLAG_LDS}")
    a.i("v_mov_b32 v22, 0")
    a.i("v_mov_b32 v23, 0")
    a.i("ds_write_b64 v17, v[22:23]")
    early1 = opt.get('early1', 1)
    if early1:
        stage_ks()
        a.i(f"s_mov_b32 s66, {STAGE}")
        issueA("s66")
    stamp(a, stamps, 78)
    a.i(f"s_waitcnt vmcnt({8 if early1 else 0}) lgkmcnt(0)")
    a.i("s_barrier")
    stamp(a, stamps, 80)
    a.i("ds_read_b32 v21, v17 offset:8")
    a.i("s_waitcnt lgkmcnt(0)")
    publish(0, "e")
    if not early1:
        stage_ks()
        a.i(f"s_mov_b32 s66, {STAGE}")
        issueA("s66")
    stage_ks()
    a.i(f"s_mov_b32 s66, {2*STAGE}")
    issueA("s66")
    p_loads(a)
    poll(0, "e")
    a.i("s_waitcnt vmcnt(0)")
    stamp(a, stamps, 82)
    a.i("s_cmp_ge_u32 s73, 2")
    a.i("s_cbranch_scc1 L_loader3")
    for tag, nB in (("a", 4), ("b", 3)):
        if tag == "b":
            a.label("L_loader3")
        n = 8 + nB
        a.i("s_mov_b32 s70, 1")
        stage_ks()
        a.i(f"s_mov_b32 s66, {STAGE}")
        issueB("s66", nB)
        stage_ks()
        a.i(f"s_mov_b32 s66, {2*STAGE}")
        issueB("s66", nB)
        p_convert(a, sfl, False)
        a.i(f"s_waitcnt vmcnt({nB + 4})")
        if stamps and tag == "a":
            stamp(a, stamps, 84)
        a.i("s_barrier")
        a.i("s_mov_b32 s66, 0")
        stage_ks(); issueA("s66"); issueB("s66", nB)
        a.i(f"s_waitcnt vmcnt({n})")
        a.i("s_barrier")
        publish(1, "o" + tag)
        a.i(f"s_mov_b32 s66, {STAGE}")
        a.i("s_mov_b32 s67, 1")
        def advance():
            a.i(f"s_add_u32 s66, s66, {STAGE}")
            a.i(f"s_cmp_eq_u32 s66, {NSLOT*STAGE}")
            a.i("s_cselect_b32 s66, 0, s66")
            a.i("s_add_u32 s67, s67, 1")
        def body(lab, last):
            a.label(lab)
            stage_ks(); issueA("s66"); issueB("s66", nB)
            advance()
            a.i(f"s_waitcnt vmcnt({n})")
            a.i(f"s_cmp_lt_u32 s67, {last}")
            a.i("s_barrier")
            a.i(f"s_cbranch_scc1 {lab}")
        body(f"L_ld1_{tag}", 4)
        if tag == "a":
            a.i(f"buffer_load_dword v22, v19, s[{R_W}:{R_W+3}], 0 offen offset:4 sc1")
        stage_ks(); issueA("s66"); issueB("s66", nB)
        advance()
        a.i(f"s_waitcnt vmcnt({n})")
        if tag == "a":
            a.i("s_cmp_lg_u32 s73, 0")
            a.i("s_cbranch_scc1 L_odd_ok")
            a.i("s_mov_b32 s69, 0x100000")
            a.label("L_odd_chk")
            a.i("v_cmp_eq_u32 vcc, v21, v22")
            a.i("s_sub_u32 s69, s69, 1")
            a.i("s_cmp_eq_u32 s69, 0")
            a.i("s_cbranch_scc1 L_odd_ok")
            a.i("s_cmp_eq_u64 vcc, -1")
            a.i("s_cbranch_scc1 L_odd_ok")
            a.i(f"buffer_load_dword v22, v19, s[{R_W}:{R_W+3}], 0 offen offset:4 sc1")
            a.i("s_waitcnt vmcnt(0)")
            a.i("s_branch L_odd_chk")
            a.label("L_odd_ok")
        a.i("s_barrier")
        body(f"L_ld2_{tag}", 13)
        a.i("s_waitcnt vmcnt(0)")
        a.i("s_barrier")
        if stamps and tag == "a":
            a.i("s_cmp_lg_u32 s73, 1")
            a.i("s_cbranch_scc1 L_nost2")
            a.i("s_mov_b64 exec, 1")
            stamp_store(a, [76, 78, 80, 82, 84, 84, 84], 2, 120, 96)
            a.label("L_nost2")
        a.i("s_endpgm")

def gen(path, stamps=False, opt=None, rep=None):
    opt = opt or {}
    a = Asm()
    if rep:
        a(HEADER + f"; @launch kernel={MAIN} grid=(256,1,1) block=(512,1,1) lds={LDS}\n; @launch kernel=report_kernel grid=(1,1,1) block=(64,1,1) lds=0")
    else:
        a(HEADER + f"; @launch grid=(256,1,1) block=(512,1,1) lds={LDS}")
    a('.amdgcn_target "amdgcn-amd-amdhsa--gfx950"')
    a(".text")
    gen_kernel(a, MAIN, stamps, opt)
    if rep:
        gen_report(a, "report_kernel", *rep)
    descriptor(a, MAIN, 216, 102)
    if rep:
        descriptor(a, "report_kernel", 16, 32)
    open(path, "w").write(a.text())

if __name__ == "__main__":
    gen("v6.s")
    gen("v6s.s", stamps=True)
```
